```python
import torch

def _softmax(x, axis=-1):
    return torch.softmax(x, dim=axis)

def _gelu(x):
    return torch.nn.functional.gelu(x, approximate='tanh')

def _silu(x):
    return torch.nn.functional.silu(x)

def _sigmoid(x):
    return torch.sigmoid(x)

def _layernorm(x, axis=-1, eps=1e-05):
    m = x.mean(dim=axis, keepdim=True)
    v = x.var(dim=axis, keepdim=True, unbiased=False)
    return (x - m) / torch.sqrt(v + eps)

def _scatter_add(tgt, idx, src, axis=0):
    return tgt.clone().index_add_(axis, idx, src)

def _segment_sum(src, seg, n):
    out = torch.zeros((n,) + src.shape[1:], dtype=src.dtype)
    return out.index_add_(0, seg, src)

def _pad(x, pw):
    flat = tuple((v for pair in reversed(pw) for v in pair))
    return torch.nn.functional.pad(x, flat)
kernel_name = 'interleave_layers__memory_aug_recurrent_mem_tr__glu_gated_geglu__prompt'

def setup_inputs():

    _w = lambda a: (lambda t: t.to(torch.bfloat16) if t.is_floating_point() else t)(torch.as_tensor(a))

    def _A_setup():
        B, S, Dm = (1, 2048, 512)
        H, Dh = (32, 128)
        M, seg = (8, 32)
        seg = min(seg, S)
        S = S // seg * seg
        return {'x': _w((lambda *s: torch.randn(*s, dtype=torch.bfloat16) * 0.05)(B, S, Dm)), 'mem0': _w((lambda *s: torch.randn(*s, dtype=torch.bfloat16) * 0.4)(B, M, Dm)), 'Wq': _w((lambda *s: torch.randn(*s, dtype=torch.bfloat16) * 0.8)(Dm, H, Dh) * Dm ** (-0.5)), 'Wk': _w((lambda *s: torch.randn(*s, dtype=torch.bfloat16) * 0.8)(Dm, H, Dh) * Dm ** (-0.5)), 'Wv': _w((lambda *s: torch.randn(*s, dtype=torch.bfloat16) * 0.4)(Dm, H, Dh) * Dm ** (-0.5)), 'Wo': _w((lambda *s: torch.randn(*s, dtype=torch.bfloat16) * 0.4)(H, Dh, Dm) * (H * Dh) ** (-0.5)), 'seg_len': seg}
    _A_in = _A_setup()

    def _B_setup():
        B, S, Dm, Df = (1, 2048, 512, 1792)
        return {'x': _w((lambda *s: torch.randn(*s, dtype=torch.bfloat16) * 0.05)(B, S, Dm)), 'w_gate': _w((lambda *s: torch.randn(*s, dtype=torch.bfloat16) * 0.4)(Dm, Df) * Dm ** (-0.5)), 'w_up': _w((lambda *s: torch.randn(*s, dtype=torch.bfloat16) * 0.4)(Dm, Df) * Dm ** (-0.5)), 'w_down': _w((lambda *s: torch.randn(*s, dtype=torch.bfloat16) * 0.4)(Df, Dm) * Df ** (-0.5))}
    _B_in = _B_setup()
    return {'A_x': _A_in['x'], 'A_mem0': _A_in['mem0'], 'A_Wq': _A_in['Wq'], 'A_Wk': _A_in['Wk'], 'A_Wv': _A_in['Wv'], 'A_Wo': _A_in['Wo'], 'A_seg_len': _A_in['seg_len'], 'B_x': _B_in['x'], 'B_w_gate': _B_in['w_gate'], 'B_w_up': _B_in['w_up'], 'B_w_down': _B_in['w_down']}

def reference(A_x, A_mem0, A_Wq, A_Wk, A_Wv, A_Wo, A_seg_len, B_x, B_w_gate, B_w_up, B_w_down):

    def _A_ref(x, mem0, Wq, Wk, Wv, Wo, seg_len):
        B, S, Dm = x.shape
        H, Dh = (Wq.shape[1], Wq.shape[2])
        M = mem0.shape[1]
        scale = Dh ** (-0.5)
        n_seg = S // seg_len
        L = M + seg_len
        idx = torch.arange(L)
        mask = (idx[:, None] < M) | (idx[:, None] >= idx[None, :])
        mem = mem0
        outs = []
        for s in range(n_seg):
            xs = x[:, s * seg_len:(s + 1) * seg_len, :].clone()
            h = torch.concatenate([mem, xs], axis=1)
            q = torch.einsum('btd,dhe->bhte', h, Wq)
            k = torch.einsum('btd,dhe->bhte', h, Wk)
            v = torch.einsum('btd,dhe->bhte', h, Wv)
            scores = torch.einsum('bhqe,bhke->bhqk', q, k) * scale
            scores = torch.where(mask[None, None], scores, -1000000000.0)
            p = _softmax(scores, axis=-1)
            o = torch.einsum('bhqk,bhke->bhqe', p, v)
            o = torch.einsum('bhte,hed->btd', o, Wo)
            mem = o[:, :M, :].clone()
            outs.append(o[:, M:, :])
        return torch.concatenate(outs, axis=1)

    def _B_ref(x, w_gate, w_up, w_down):
        g = torch.einsum('bsd,df->bsf', x, w_gate)
        u = torch.einsum('bsd,df->bsf', x, w_up)
        h = _gelu(g) * u
        return torch.einsum('bsf,fd->bsd', h, w_down)
    x = A_x
    x = x + _A_ref(_layernorm(x, axis=-1), A_mem0, A_Wq, A_Wk, A_Wv, A_Wo, A_seg_len)
    x = x + _B_ref(_layernorm(x, axis=-1), B_w_gate, B_w_up, B_w_down)
    x = x + _A_ref(_layernorm(x, axis=-1), A_mem0, A_Wq, A_Wk, A_Wv, A_Wo, A_seg_len)
    x = x + _B_ref(_layernorm(x, axis=-1), B_w_gate, B_w_up, B_w_down)
    return x
```

```python
import re

REG_RE = re.compile(r'^(-|abs\()?([vas])(\d+)\)?$')
RNG_RE = re.compile(r'^(-)?([vas])\[(\d+):(\d+)\]$')
TRANS = ('v_exp_f32', 'v_rcp_f32', 'v_rsq_f32', 'v_sqrt_f32', 'v_log_f32')


def regs_of(tok):
    tok = tok.strip()
    m = REG_RE.match(tok)
    if m:
        return [m.group(2) + m.group(3)]
    m = RNG_RE.match(tok)
    if m:
        return [m.group(2) + str(i) for i in range(int(m.group(3)), int(m.group(4)) + 1)]
    if tok in ('vcc', 'exec', 'm0'):
        return [tok]
    if tok in ('vcc_lo', 'vcc_hi'):
        return ['vcc']
    if tok in ('exec_lo', 'exec_hi'):
        return ['exec']
    return []


class Ins:
    __slots__ = ('text', 'op', 'kind', 'wr', 'rd', 'a', 'b', 'c', 'd', 'tag', 'label', 'target', 'cond',
                 'nops', 'wide_store', 'waits', 'is_dpp', 'comment')

    def __init__(self, text, tag=None, comment=None):
        self.text = text
        self.tag = tag
        self.comment = comment
        self.label = None
        self.target = None
        self.cond = False
        self.nops = 1
        self.wide_store = []
        self.waits = None
        self.is_dpp = False
        self.wr = []
        self.rd = []
        self.a = self.b = self.c = self.d = []
        parts = text.split(None, 1)
        op = parts[0]
        self.op = op
        rest = parts[1] if len(parts) > 1 else ''
        ops = [o.strip() for o in rest.split(',')] if rest else []
        mods = ''
        if ops:
            lastp = ops[-1].split(None, 1)
            ops[-1] = lastp[0]
            mods = lastp[1] if len(lastp) > 1 else ''
        R = [regs_of(o) for o in ops]
        flat = lambda ls: [r for l in ls for r in l]
        k = 'other'
        if op.endswith(':'):
            k = 'label'
            self.label = op[:-1]
            self.nops = 0
        elif op in ('WAIT_VM', 'WAIT_LG'):
            k = 'pseudo'
            self.nops = 0
        elif op.startswith('v_mfma'):
            k = 'mfma'
            self.d, self.a, self.b, self.c = R[0], R[1], R[2], R[3]
            self.wr = R[0]
            self.rd = flat(R[1:])
        elif op.startswith('v_smfmac'):
            k = 'mfma'
            self.d, self.a, self.b, self.c = R[0], R[1], R[2] + R[3], R[0]
            self.wr = R[0]
            self.rd = flat(R)
        elif op.startswith('v_cmp'):
            k = 'valu'
            self.wr = R[0]
            self.rd = flat(R[1:])
        elif op.startswith('v_permlane') and 'swap' in op:
            k = 'valu'
            self.wr = flat(R)
            self.rd = flat(R)
        elif op.startswith('v_'):
            k = 'valu'
            self.wr = R[0]
            self.rd = flat(R[1:])
            if op.startswith('v_fmac') or op.startswith('v_dot2c') or op.startswith('v_writelane'):
                self.rd = self.rd + R[0]
            if op.startswith('v_cndmask') and len(ops) == 3:
                self.rd = self.rd + ['vcc']
            if op.endswith('_dpp'):
                self.is_dpp = True
                self.rd = self.rd + R[0]
            if op == 'v_nop':
                self.wr = []
        elif op.startswith('ds_read') or op.startswith('ds_bpermute') or op.startswith('ds_swizzle'):
            k = 'ds'
            self.wr = R[0]
            self.rd = flat(R[1:])
        elif op.startswith('ds_write'):
            k = 'ds'
            self.rd = flat(R)
        elif op.startswith('buffer_load'):
            k = 'vmem'
            if re.search(r'\blds\b', mods):
                self.rd = flat(R) + ['m0']
            else:
                self.wr = R[0]
                self.rd = flat(R[1:])
        elif op.startswith('buffer_store'):
            k = 'vmem'
            self.rd = flat(R)
            if op.endswith('x4') or op.endswith('x3'):
                self.wide_store = R[0]
        elif op.startswith('buffer_atomic'):
            k = 'vmem'
            self.rd = flat(R)
            if re.search(r'\bsc0\b', mods):
                self.wr = R[0]
        elif op.startswith('s_load') or op in ('s_memtime', 's_memrealtime'):
            k = 'smem'
            self.wr = R[0]
            self.rd = flat(R[1:])
        elif op == 's_waitcnt':
            k = 'wait'
            w = {}
            for nm, v in re.findall(r'(vmcnt|lgkmcnt)\((\d+)\)', text):
                w[nm] = int(v)
            self.waits = w
        elif op == 's_nop':
            k = 'nop'
            self.nops = int(ops[0], 0) + 1
        elif op == 's_branch':
            k = 'branch'
            self.target = ops[0]
        elif op.startswith('s_cbranch'):
            k = 'branch'
            self.target = ops[0]
            self.cond = True
        elif op == 's_endpgm':
            k = 'end'
        elif op in ('s_barrier', 's_sleep', 's_setprio'):
            k = 'other'
        elif op.startswith('s_cmp') or op.startswith('s_bitcmp'):
            k = 'salu'
            self.rd = flat(R)
        elif op.startswith('s_'):
            k = 'salu'
            self.wr = R[0] if R else []
            self.rd = flat(R[1:])
            if 'saveexec' in op:
                self.wr = self.wr + ['exec']
                self.rd = self.rd + ['exec']
            if op.startswith('s_addk') or op.startswith('s_mulk') or op.startswith('s_cmov'):
                self.rd = self.rd + R[0]
        else:
            raise ValueError('unknown instruction: ' + text)
        self.kind = k


def is_vec(r):
    return r[0] in 'va' and r != 'vcc'


def hazard_need(p, c):
    need = 0
    pk, ck = p.kind, c.kind
    if pk == 'valu':
        vw = [r for r in p.wr if is_vec(r)]
        sw = [r for r in p.wr if not is_vec(r)]
        if vw:
            s = set(vw)
            rdhit = any(r in s for r in c.rd)
            if rdhit:
                if ck == 'mfma':
                    need = max(need, 2)
                elif ck == 'valu':
                    if c.op.startswith('v_permlane') or c.is_dpp:
                        need = max(need, 2)
                    if c.op.startswith('v_readlane') or c.op.startswith('v_readfirstlane'):
                        need = max(need, 1)
                    if p.op in TRANS:
                        need = max(need, 1)
                elif p.op in TRANS and ck in ('vmem', 'ds'):
                    need = max(need, 1)
        if sw:
            s = set(sw)
            if any(r in s for r in c.rd):
                if ck == 'valu':
                    need = max(need, 4 if (c.op.startswith('v_readlane') or c.op.startswith('v_writelane')) else 2)
                elif ck == 'vmem':
                    need = max(need, 5)
                elif ck in ('salu', 'smem'):
                    need = max(need, 1)
            if 'vcc' in s and ck == 'branch' and 'vcc' in c.op:
                need = max(need, 1)
    elif pk == 'mfma':
        s = set(p.d)
        if ck == 'mfma':
            if any(r in s for r in c.a) or any(r in s for r in c.b):
                need = max(need, 8)
            if any(r in s for r in c.c):
                if c.c != p.d:
                    need = max(need, 6)
            elif any(r in s for r in c.d):
                need = max(need, 8)
        elif ck in ('valu', 'vmem', 'ds'):
            if any(r in s for r in c.rd) or any(r in s for r in c.wr):
                need = max(need, 8)
            if ck == 'valu' and p.c and any(r in set(p.c) for r in c.wr):
                need = max(need, 3)
    elif pk == 'salu':
        if 'm0' in p.wr and ck == 'vmem' and 'm0' in c.rd:
            need = max(need, 1)
    elif pk == 'vmem':
        if p.wide_store:
            s = set(p.wide_store)
            if any(r in s for r in c.wr):
                need = max(need, 2)
    return need


class Asm:
    def __init__(self):
        self.ins = []
        self.uid = 0

    def __call__(self, text, tag=None, comment=None):
        for line in text.split('\n'):
            line = line.split(';')[0].strip()
            if not line:
                continue
            self.ins.append(Ins(line, tag, comment))
        return self

    def label(self, name):
        self.ins.append(Ins(name + ':'))

    def newlabel(self, base='L'):
        self.uid += 1
        return f'{base}_{self.uid}'

    def newtag(self, base='t'):
        self.uid += 1
        return f'#{base}{self.uid}'

    def wait_vm(self, tag):
        self.ins.append(Ins('WAIT_VM', tag))

    def wait_lg(self, tag):
        self.ins.append(Ins('WAIT_LG', tag))

    def capture(self, fn, *args, **kw):
        saved = self.ins
        self.ins = []
        fn(*args, **kw)
        out = self.ins
        self.ins = saved
        return out

    def interleave(self, main, side, per=2, start=0, cost=None):
        si = 0
        nm = 0
        for i in main:
            self.ins.append(i)
            if i.kind == 'mfma':
                nm += 1
                if nm > start:
                    budget = per
                    while si < len(side) and budget > 0:
                        s = side[si]
                        c = 2 if s.op in TRANS else (0 if s.kind in ('pseudo',) else 1)
                        if s.kind in ('vmem',):
                            c = 2
                        if c > budget and budget < per:
                            break
                        self.ins.append(s)
                        si += 1
                        budget -= c
        self.ins.extend(side[si:])

    def _blocks(self):
        blocks = []
        cur = []
        for i in self.ins:
            if i.kind == 'label' and cur:
                blocks.append(cur)
                cur = []
            cur.append(i)
            if i.kind in ('branch', 'end'):
                blocks.append(cur)
                cur = []
        if cur:
            blocks.append(cur)
        lab = {}
        for bi, b in enumerate(blocks):
            if b[0].kind == 'label':
                lab[b[0].label] = bi
        succ = []
        for bi, b in enumerate(blocks):
            last = b[-1]
            s = []
            if last.kind == 'branch':
                if last.target not in lab:
                    raise ValueError('unknown label ' + last.target)
                s.append(lab[last.target])
                if last.cond and bi + 1 < len(blocks):
                    s.append(bi + 1)
            elif last.kind != 'end' and bi + 1 < len(blocks):
                s.append(bi + 1)
            succ.append(s)
        return blocks, succ

    @staticmethod
    def _run_block(b, st, emit):
        vm, lg = dict(st[0]), dict(st[1])
        out = []

        def do_wait(nv, nl):
            parts = []
            if nv is not None:
                nv = min(nv, 63)
                parts.append(f'vmcnt({nv})')
                for k in [k for k, d in vm.items() if d >= nv]:
                    del vm[k]
            if nl is not None:
                nl = min(nl, 15)
                parts.append(f'lgkmcnt({nl})')
                for k in [k for k, d in lg.items() if d >= nl]:
                    del lg[k]
            if parts and emit:
                out.append(Ins('s_waitcnt ' + ' '.join(parts)))

        for i in b:
            if i.kind == 'pseudo':
                if i.op == 'WAIT_VM':
                    if i.tag in vm:
                        do_wait(vm[i.tag], None)
                else:
                    if i.tag in lg:
                        do_wait(None, lg[i.tag])
                continue
            if i.kind == 'wait':
                if 'vmcnt' in i.waits:
                    n = i.waits['vmcnt']
                    for k in [k for k, d in vm.items() if d >= n]:
                        del vm[k]
                if 'lgkmcnt' in i.waits:
                    n = i.waits['lgkmcnt']
                    for k in [k for k, d in lg.items() if d >= n]:
                        del lg[k]
                out.append(i)
                continue
            touched = list(i.rd) + list(i.wr)
            nv = nl = None
            for r in touched:
                if r in vm:
                    if i.kind == 'vmem' and r in i.wr and r not in i.rd:
                        continue
                    nv = vm[r] if nv is None else min(nv, vm[r])
                if r in lg:
                    if i.kind == 'ds' and r in i.wr and r not in i.rd:
                        continue
                    nl = lg[r] if nl is None else min(nl, lg[r])
            if nv is not None or nl is not None:
                do_wait(nv, nl)
            out.append(i)
            if i.kind == 'vmem':
                for k in vm:
                    vm[k] += 1
                for r in i.wr:
                    vm[r] = 0
                if i.tag:
                    vm[i.tag] = 0
            elif i.kind == 'ds':
                for k in lg:
                    lg[k] += 1
                for r in i.wr:
                    lg[r] = 0
                if i.tag:
                    lg[i.tag] = 0
            elif i.kind == 'smem':
                for k in lg:
                    lg[k] = 0
                for r in i.wr:
                    lg[r] = 0
                lg['#smem'] = 0
            if '#smem' in lg:
                for k in lg:
                    lg[k] = 0
        return out, (vm, lg)

    def insert_waits(self):
        blocks, succ = self._blocks()
        n = len(blocks)
        inst = [None] * n
        inst[0] = ({}, {})
        work = [0]
        it = 0
        while work:
            it += 1
            if it > 200000:
                raise RuntimeError('waitcnt dataflow did not converge')
            bi = work.pop()
            _, o = self._run_block(blocks[bi], inst[bi], False)
            for s in succ[bi]:
                if inst[s] is None:
                    inst[s] = (dict(o[0]), dict(o[1]))
                    work.append(s)
                else:
                    ch = False
                    for x in (0, 1):
                        d = inst[s][x]
                        for k, v in o[x].items():
                            if k not in d or v < d[k]:
                                d[k] = v
                                ch = True
                    if ch:
                        work.append(s)
        res = []
        for bi, b in enumerate(blocks):
            st = inst[bi] if inst[bi] is not None else ({}, {})
            o, _ = self._run_block(b, st, True)
            res.extend(o)
        self.ins = res

    def insert_nops(self):
        WIN = 12
        out = []
        for c in self.ins:
            if c.kind not in ('label',):
                need = self._need_against(out, c, WIN, linear=True)
                if need > 0:
                    out.append(Ins(f's_nop {need - 1}'))
            out.append(c)
        self.ins = out
        changed = True
        while changed:
            changed = False
            pos = {i.label: k for k, i in enumerate(self.ins) if i.kind == 'label'}
            for k, br in enumerate(self.ins):
                if br.kind != 'branch':
                    continue
                tail = self.ins[max(0, k - 40):k + 1]
                t = pos[br.target]
                path = list(tail)
                dist = 0
                worst = 0
                for c in self.ins[t + 1:t + 40]:
                    if dist >= WIN:
                        break
                    if c.kind == 'label':
                        continue
                    need = self._need_against(path, c, WIN, linear=True)
                    worst = max(worst, need)
                    path.append(c)
                    dist += c.nops
                    if c.kind in ('end',) or (c.kind == 'branch' and not c.cond):
                        break
                if worst > 0:
                    self.ins.insert(t + 1, Ins(f's_nop {worst - 1}'))
                    changed = True
                    break

    @staticmethod
    def _need_against(prev, c, WIN, linear):
        dist = 0
        need = 0
        for p in reversed(prev):
            if p.kind == 'label':
                continue
            if dist >= WIN:
                break
            if p.kind in ('valu', 'mfma', 'salu', 'vmem'):
                h = hazard_need(p, c)
                if h > dist:
                    need = max(need, h - dist)
            dist += p.nops
        return need

    def text(self):
        lines = []
        for i in self.ins:
            if i.kind == 'label':
                lines.append(i.text)
            else:
                lines.append('  ' + i.text)
        return '\n'.join(lines) + '\n'
```

```python
KB = 1024
MB = 1024 * 1024
NSEG = 64

FLAGS = 0
FLAG_X = FLAGS + 0
FLAG_KV = FLAGS + 32 * KB
FLAG_M = FLAGS + 96 * KB
FLAG_H_ = FLAGS + 112 * KB
FLAGS2 = 128 * KB
FLAG_O = FLAGS2 + 0
FLAG_H = FLAGS2 + 64 * KB
FLAG_END = 256 * KB

MRING = 256 * KB
PRING = 1 * MB

XBLK = 36 * KB
XB = 2 * MB
HB = 12 * MB
HBLK = 112 * KB
OB = 32 * MB
OBLK = 256 * KB
QB = 64 * MB
QBLK = 32 * KB
DBGB = 200 * MB
WS_BYTES = 256 * MB

R_CHAIN = 0
R_H = 64
R_W = 160
R_F2 = 208
R_F1 = 224
R_SPARE = 252
```

```python
import math
import struct
import sys
import os

sys.path.insert(0, os.path.dirname(os.path.abspath(__file__)))
from asmlib import Asm, Ins
from layout import *

NAME = 'interleave_layers__memory_aug_recurrent_mem_tr__glu_gated_geglu__prompt'
FORCE_SAFE = int(os.environ.get('FORCE_SAFE', '0'))
PROF = int(os.environ.get('PROF', '0'))
LG = int(os.environ.get('LG', '16'))
SPIN_LIMIT = 1 << 17

a = Asm()


def f2u(x):
    return struct.unpack('<I', struct.pack('<f', x))[0]


def hx(x):
    return hex(x & 0xffffffff)


def v(i, n=1):
    return f'v{i}' if n == 1 else f'v[{i}:{i + n - 1}]'


def ar(i, n=1):
    return f'a{i}' if n == 1 else f'a[{i}:{i + n - 1}]'


def s(i, n=1):
    return f's{i}' if n == 1 else f's[{i}:{i + n - 1}]'


def wreg(idx, n):
    if idx < 256:
        assert idx + n <= 256
        return ar(idx, n)
    assert idx + n <= 384
    return v(128 + idx - 256, n)


S_WS, S_AUX, S_DBG = 's[4:7]', 's[8:11]', 's[12:15]'
PTR = dict(x=16, mem0=18, Wq=20, Wk=22, Wv=24, Wo=26, seg=28, Bx=30, Wg=32, Wu=34, Wd=36, out=38, dbg=40, ws=42)
NBYTES = dict(x=2048 * 1024, mem0=8192, Wq=4 * MB, Wk=4 * MB, Wv=4 * MB, Wo=4 * MB, Wg=512 * 3584, Wu=512 * 3584,
              Wd=1792 * 1024, out=2048 * 1024)
sW, sROLE, sSAFE, sSPIN, sLB, sERR = 's44', 's45', 's46', 's47', 's48', 's49'
sT0, sT1, sT2, sT3 = 's92', 's93', 's94', 's95'
sP0, sP1 = 's[96:97]', 's[98:99]'
LANE, L16 = 0, 1

LDS_MISC = 163840 - 512


def set_aux(name):
    p = PTR[name]
    a(f's_mov_b32 s8, s{p}')
    a(f's_and_b32 s9, s{p + 1}, 0xffff')
    a(f's_mov_b32 s10, {hx(NBYTES[name])}')
    a('s_mov_b32 s11, 0x20000')


def spin_fail(code):
    a(f's_add_u32 {sSPIN}, {sSPIN}, 1')
    a(f's_mov_b32 {sERR}, {code}')
    a(f's_cmp_gt_u32 {sSPIN}, {SPIN_LIMIT}')
    a('s_cbranch_scc1 TIMEOUT')


def poll_all(voff, soff, vtmp, code, sleep=1):
    lp, dn = a.newlabel('poll'), a.newlabel('polld')
    a.label(lp)
    a(f'buffer_load_dword {v(vtmp)}, {v(voff)}, {S_WS}, {soff} offen sc1')
    a(f'v_cmp_eq_u32 vcc, 0, {v(vtmp)}')
    a(f's_cbranch_vccz {dn}')
    spin_fail(code)
    if sleep:
        a(f's_sleep {sleep}')
    a(f's_branch {lp}')
    a.label(dn)


def set_flag(soff, vone, vzero):
    a('s_mov_b64 exec, 1')
    a(f'buffer_store_dword {v(vone)}, {v(vzero)}, {S_WS}, {soff} offen sc1')
    a('s_mov_b64 exec, -1')


def xor_reduce(op, x, t, levels=(16, 32)):
    for lv in levels:
        a(f'v_mov_b32 {v(t)}, {v(x)}')
        a(f'v_permlane{lv}_swap_b32 {v(x)}, {v(t)}')
        a(f'{op} {v(x)}, {v(x)}, {v(t)}')


def round_bf16(x):
    a(f'v_cvt_pk_bf16_f32 {v(x)}, {v(x)}, {v(x)}')
    a(f'v_lshlrev_b32 {v(x)}, 16, {v(x)}')


def load_units(units, vt):
    VG, VA = vt, vt + 1
    TMP = vt + 8
    g, r, c = vt + 5, vt + 6, vt + 7
    a(f'v_lshrrev_b32 {v(g)}, 4, {v(LANE)}')
    a(f'v_bfe_u32 {v(r)}, {v(LANE)}, 2, 2')
    a(f'v_and_b32 {v(c)}, 3, {v(LANE)}')
    modes = {}
    for u in units:
        key = (u['kmode'], u['cmode'])
        if key in modes:
            continue
        d = VA + len(modes)
        assert len(modes) < 4
        modes[key] = d
        t = TMP
        if u['kmode'] == 'nat':
            a(f'v_lshl_add_u32 {v(d)}, {v(g)}, 3, {v(r)}')
        elif u['kmode'] == 'att':
            a(f'v_lshl_add_u32 {v(d)}, {v(g)}, 2, {v(r)}')
        elif u['kmode'] == 'cwo':
            a(f'v_lshrrev_b32 {v(t)}, 1, {v(r)}')
            a(f'v_lshlrev_b32 {v(d)}, 5, {v(t)}')
            a(f'v_and_b32 {v(t)}, 1, {v(r)}')
            a(f'v_add_u32 {v(d)}, {v(d)}, {v(t)}')
            a(f'v_and_b32 {v(t)}, 1, {v(g)}')
            a(f'v_lshl_add_u32 {v(d)}, {v(t)}, 4, {v(d)}')
            a(f'v_lshrrev_b32 {v(t)}, 1, {v(g)}')
            a(f'v_lshl_add_u32 {v(d)}, {v(t)}, 2, {v(d)}')
        a(f'v_lshlrev_b32 {v(d)}, 6, {v(d)}')
        sh = 3 if u['cmode'] == 'nat' else 4
        a(f'v_lshl_add_u32 {v(d)}, {v(c)}, {sh}, {v(d)}')
        a(f'v_add_u32 {v(d)}, {sLB}, {v(d)}')
    WB = vt + 5
    a(f'v_add_u32 {v(WB)}, {sLB}, {v(L16)}')
    state = dict(mat=None, pitch=None)
    tags = {}

    def issue(n):
        u = units[n]
        if state['mat'] != u['mat']:
            set_aux(u['mat'])
            state['mat'] = u['mat']
        if state['pitch'] != u['pitch']:
            a(f's_mov_b32 {sT0}, {u["pitch"]}')
            a(f'v_lshrrev_b32 {v(VG)}, 2, {v(LANE)}')
            a(f'v_mul_lo_u32 {v(VG)}, {v(VG)}, {sT0}')
            a(f'v_lshl_add_u32 {v(VG)}, {v(c)}, 4, {v(VG)}')
            state['pitch'] = u['pitch']
        slot = n % 8
        a(f's_add_u32 m0, {sLB}, {slot * 4096}')
        for j in range(4):
            off = (u['row0'] + 16 * j) * u['pitch'] + u['cadd'] - j * 1024
            assert off >= 0
            a(f's_add_u32 {sT0}, {u["scol"]}, {hx(off)}')
            tg = a.newtag('ld')
            a(f'buffer_load_dwordx4 {v(VG)}, {S_AUX}, {sT0} offen offset:{j * 1024} lds', tag=tg)
            tags[n] = tg

    N = len(units)
    for n in range(min(8, N)):
        issue(n)
    for n in range(N):
        u = units[n]
        slot = n % 8
        a.wait_vm(tags[n])
        d = modes[(u['kmode'], u['cmode'])]
        tg = None
        for kk in range(2):
            for tile in range(2):
                for p in range(2):
                    if u['kmode'] == 'nat':
                        ro = 4 * p + 32 * kk
                    elif u['kmode'] == 'att':
                        ro = 16 * p + 32 * kk
                    else:
                        ro = 2 * p + 8 * kk
                    co = 32 * tile if u['cmode'] == 'nat' else 8 * tile
                    off = slot * 4096 + ro * 64 + co
                    dst = v(TMP + tile * 8 + kk * 4 + p * 2, 2) if u.get('lds') else u['dst'](kk, tile, p)
                    tg = a.newtag('tr')
                    a(f'ds_read_b64_tr_b16 {dst}, {v(d)} offset:{off}', tag=tg)
        a.wait_lg(tg)
        if u.get('lds'):
            assert n + 8 >= N
            for q in range(4):
                a(f'ds_write_b128 {v(WB)}, {v(TMP + 4 * q, 4)} offset:{slot * 4096 + q * 1024}')
        if n + 8 < N:
            issue(n + 8)
    a('s_waitcnt lgkmcnt(0)')


def prologue():
    a('s_cmp_ge_u32 s2, 256')
    a('s_cbranch_scc1 END')
    a('s_load_dwordx16 s[16:31], s[0:1], 0')
    a('s_load_dwordx8 s[32:39], s[0:1], 64')
    a('s_load_dwordx4 s[40:43], s[0:1], 96')
    a('v_lshrrev_b32 v2, 6, v0')
    a('v_and_b32 v0, 63, v0')
    a(f'v_readfirstlane_b32 {sW}, v2')
    a('v_lshlrev_b32 v1, 4, v0')
    a('s_getreg_b32 s50, hwreg(HW_REG_XCC_ID)')
    a('s_and_b32 s50, s50, 0xf')
    a(f's_mov_b32 {sSAFE}, 0')
    a(f's_mov_b32 {sSPIN}, 0')
    a(f's_mov_b32 {sERR}, 0')
    a(f's_lshl_b32 {sLB}, {sW}, 15')
    a('s_waitcnt lgkmcnt(0)')
    a('s_mov_b32 s4, s42')
    a('s_and_b32 s5, s43, 0xffff')
    a(f's_mov_b32 s6, {hx(WS_BYTES)}')
    a('s_mov_b32 s7, 0x20000')
    a('s_mov_b32 s12, s40')
    a('s_and_b32 s13, s41, 0xffff')
    a('s_mov_b32 s14, 256')
    a('s_mov_b32 s15, 0x20000')
    set_aux('x')
    for i in range(4):
        a(f'v_mov_b32 v{4 + i}, -1')
        a(f'v_mov_b32 v{8 + i}, 0')
    a(f's_lshl_b32 {sT0}, s2, 12')
    a(f's_lshl_b32 {sT1}, {sW}, 10')
    a(f's_add_u32 {sT0}, {sT0}, {sT1}')
    a(f's_add_u32 {sT0}, {sT0}, {hx(PRING)}')
    a(f'buffer_store_dwordx4 v[4:7], v1, {S_WS}, {sT0} offen sc1')
    l1, l2, l3 = a.newlabel('pi'), a.newlabel('pi'), a.newlabel('pi')
    a(f's_cmp_lg_u32 {sW}, 1')
    a(f's_cbranch_scc1 {l1}')
    a(f's_lshl_b32 {sT0}, s2, 10')
    a(f'buffer_store_dwordx4 v[8:11], v1, {S_WS}, {sT0} offen sc1')
    a.label(l1)
    a(f's_cmp_lg_u32 {sW}, 2')
    a(f's_cbranch_scc1 {l2}')
    a(f's_lshl_b32 {sT0}, s2, 8')
    a(f's_add_u32 {sT0}, {sT0}, {hx(MRING)}')
    a('s_mov_b64 exec, 0xffff')
    a(f'buffer_store_dwordx4 v[4:7], v1, {S_WS}, {sT0} offen sc1')
    a('s_mov_b64 exec, -1')
    a.label(l2)
    a(f'v_mov_b32 v12, {LDS_MISC}')
    a(f's_cmp_lg_u32 {sW}, 0')
    a(f's_cbranch_scc1 {l3}')
    a('s_min_u32 s51, s50, 8')
    a('s_lshl_b32 s51, s51, 2')
    a('v_mov_b32 v2, s51')
    a('v_mov_b32 v3, 1')
    a('s_mov_b64 exec, 1')
    a(f'buffer_atomic_add v3, v2, {S_DBG}, 0 offen sc0')
    a('ds_write_b32 v12, v3')
    a('s_mov_b64 exec, -1')
    a.label(l3)
    a('s_waitcnt vmcnt(0) lgkmcnt(0)')
    a('s_barrier')
    a('ds_read_b32 v3, v12')
    a('v_readfirstlane_b32 s51, v3')
    a(f's_lshl_b32 {sROLE}, s50, 5')
    a(f's_add_u32 {sROLE}, {sROLE}, s51')
    a('s_cmp_ge_u32 s51, 32')
    a('s_cselect_b32 s52, 1, 0')
    a('s_cmp_ge_u32 s50, 8')
    a('s_cselect_b32 s52, 1, s52')
    if FORCE_SAFE:
        a('s_cmp_eq_u32 s2, 77')
        a('s_cselect_b32 s52, 1, s52')
    l4 = a.newlabel('pi')
    a(f's_cmp_lg_u32 {sW}, 0')
    a(f's_cbranch_scc1 {l4}')
    a('v_mov_b32 v2, 40')
    a('v_mov_b32 v3, s52')
    a('v_mov_b32 v4, 36')
    a('v_mov_b32 v5, 1')
    a('s_mov_b64 exec, 1')
    a(f'buffer_atomic_or v3, v2, {S_DBG}, 0 offen sc0')
    a('s_waitcnt vmcnt(0)')
    a(f'buffer_atomic_add v5, v4, {S_DBG}, 0 offen sc0')
    a('ds_write_b32 v12, v5 offset:4')
    a('s_mov_b64 exec, -1')
    a.label(l4)
    a('s_cmp_eq_u32 s52, 0')
    a('s_cbranch_scc1 DISPATCH')
    a(f's_mov_b32 {sROLE}, 255')
    a.label('DISPATCH')
    a(f's_cmp_lt_u32 {sROLE}, {R_H}')
    a('s_cbranch_scc1 ROLE_CHAIN')
    a(f's_cmp_lt_u32 {sROLE}, {R_W}')
    a('s_cbranch_scc1 ROLE_H')
    a(f's_cmp_lt_u32 {sROLE}, {R_F2}')
    a('s_cbranch_scc1 ROLE_W')
    a(f's_cmp_lt_u32 {sROLE}, {R_F1}')
    a('s_cbranch_scc1 ROLE_F2')
    a(f's_cmp_lt_u32 {sROLE}, {R_SPARE}')
    a('s_cbranch_scc1 ROLE_F1')
    census()
    a('s_branch END')


def census():
    done = a.newlabel('cen')
    skip = a.newlabel('cen')
    lp = a.newlabel('cen')
    ok = a.newlabel('cen')
    a(f's_cmp_lg_u32 {sSAFE}, 0')
    a(f's_cbranch_scc1 {done}')
    a(f'v_mov_b32 v4, {LDS_MISC}')
    a(f's_cmp_lg_u32 {sW}, 0')
    a(f's_cbranch_scc1 {skip}')
    a('v_mov_b32 v5, 36')
    a.label(lp)
    a(f'buffer_load_dwordx2 v[2:3], v5, {S_DBG}, 0 offen sc1')
    a('v_cmp_eq_u32 vcc, 0x100, v2')
    a(f's_cbranch_vccnz {ok}')
    spin_fail(1)
    a('s_sleep 2')
    a(f's_branch {lp}')
    a.label(ok)
    a(f'buffer_load_dwordx2 v[2:3], v5, {S_DBG}, 0 offen sc1')
    a('ds_write_b32 v4, v3 offset:8')
    a.label(skip)
    a('s_waitcnt lgkmcnt(0)')
    a('s_barrier')
    a('ds_read_b64 v[2:3], v4 offset:4' if False else 'ds_read2_b32 v[2:3], v4 offset0:1 offset1:2')
    a(f'v_readfirstlane_b32 {sT0}, v2')
    a(f'v_readfirstlane_b32 {sT1}, v3')
    a(f's_cmp_eq_u32 {sT1}, 0')
    a(f's_cbranch_scc1 {done}')
    a(f's_mov_b32 {sSAFE}, 1')
    a(f's_mov_b32 {sROLE}, {sT0}')
    a('s_branch DISPATCH')
    a.label(done)


def part_stats(x, mean, m2, t):
    a(f'v_add_f32 {v(mean)}, {v(x)}, {v(x + 1)}')
    a(f'v_add_f32 {v(m2)}, {v(x + 2)}, {v(x + 3)}')
    a(f'v_add_f32 {v(t)}, {v(x + 4)}, {v(x + 5)}')
    a(f'v_add_f32 {v(mean)}, {v(mean)}, {v(m2)}')
    a(f'v_add_f32 {v(m2)}, {v(x + 6)}, {v(x + 7)}')
    a(f'v_add_f32 {v(t)}, {v(t)}, {v(m2)}')
    a(f'v_add_f32 {v(mean)}, {v(mean)}, {v(t)}')
    xor_reduce('v_add_f32', mean, t)
    a(f'v_mul_f32 {v(mean)}, {hx(f2u(1.0 / 32))}, {v(mean)}')
    for i in range(8):
        a(f'v_sub_f32 {v(x + i)}, {v(x + i)}, {v(mean)}')
    a(f'v_mul_f32 {v(m2)}, {v(x)}, {v(x)}')
    for i in range(1, 8):
        a(f'v_fmac_f32 {v(m2)}, {v(x + i)}, {v(x + i)}')
    xor_reduce('v_add_f32', m2, t)


def unpack8(src, dst):
    for i in range(4):
        a(f'v_lshlrev_b32 {v(dst + 2 * i)}, 16, {v(src + i)}')
        a(f'v_and_b32 {v(dst + 2 * i + 1)}, 0xffff0000, {v(src + i)}')


def x0_job(sseg):
    set_aux('x')
    D = 16
    a('v_and_b32 v2, 15, v0')
    a('v_lshlrev_b32 v3, 10, v2')
    a('v_lshrrev_b32 v4, 4, v0')
    a('v_lshl_add_u32 v3, v4, 4, v3')
    a('v_lshlrev_b32 v5, 3, v2')
    a(f's_lshl_b32 {sT0}, {sseg}, 15')
    a(f's_lshr_b32 {sT1}, {sW}, 1')
    a(f's_lshl_b32 {sT2}, {sT1}, 14')
    a(f's_add_u32 {sT0}, {sT0}, {sT2}')
    a(f's_and_b32 {sT3}, {sW}, 1')
    a(f's_lshl_b32 {sT2}, {sT3}, 9')
    a(f's_add_u32 {sT0}, {sT0}, {sT2}')
    for i in range(8):
        a(f'buffer_load_dwordx4 {v(D + 4 * i, 4)}, v3, {S_AUX}, {sT0} offen offset:{64 * i}')
    a(f's_mul_i32 s52, {sseg}, {XBLK}')
    a(f's_add_u32 s52, s52, {hx(XB)}')
    a(f's_lshl_b32 {sT2}, {sW}, 13')
    a(f's_add_u32 s53, s52, {sT2}')
    a(f's_add_u32 s54, s53, 4096')
    a(f's_lshl_b32 {sT2}, {sT3}, 11')
    a(f's_add_u32 s52, s52, {sT2}')
    a(f's_lshl_b32 {sT2}, {sT1}, 7')
    a(f's_add_u32 s52, s52, {sT2}')
    a(f's_add_u32 s52, s52, 32768')
    for i in range(8):
        a(f'buffer_store_dwordx4 {v(D + 4 * i, 4)}, v1, {S_WS}, {"s53" if i < 4 else "s54"} offen offset:{(i & 3) * 1024} sc1')
        unpack8(D + 4 * i, 48)
        part_stats(48, 56, 57, 58)
        a('s_mov_b64 exec, 0xffff')
        a(f'buffer_store_dwordx2 v[56:57], v5, {S_WS}, s52 offen offset:{256 * i} sc1')
        a('s_mov_b64 exec, -1')
    a(f's_lshl_b32 s52, {sseg}, 7')
    a(f's_lshl_b32 {sT2}, {sT3}, 6')
    a(f's_add_u32 s52, s52, {sT2}')
    a(f's_lshl_b32 {sT2}, {sT1}, 2')
    a(f's_add_u32 s52, s52, {sT2}')
    a(f's_add_u32 s52, s52, {hx(FLAG_X)}')
    a('v_lshlrev_b32 v6, 3, v0')
    a('v_mov_b32 v7, 1')
    a('s_waitcnt vmcnt(0)')
    a('s_mov_b64 exec, 0xff')
    a(f'buffer_store_dword v7, v6, {S_WS}, s52 offen sc1')
    a('s_mov_b64 exec, -1')


def dma_block(ssrc, lds_base, per_wave, tagname):
    a(f's_mul_i32 {sT0}, {sW}, {per_wave * 1024}')
    a(f's_add_u32 {sT1}, {sT0}, {ssrc}')
    a(f's_add_u32 {sT0}, {sT0}, {lds_base}')
    for j in range(per_wave):
        if j % 4 == 0:
            a(f's_add_u32 m0, {sT0}, {j * 1024}')
            if j:
                a(f's_add_u32 {sT1}, {sT1}, 4096')
        a(f'buffer_load_dwordx4 {v(L16)}, {S_WS}, {sT1} offen offset:{(j % 4) * 1024} sc1 lds', tag=tagname)


def stats_combine(stat_lds, scr, T, vrow8, vscrw):
    for i in range(8):
        a(f'ds_read_b64 {v(T + 2 * i, 2)}, {v(vrow8)} offset:{stat_lds + 256 * i}')
    m, q, t = T + 16, T + 17, T + 18
    a(f'v_add_f32 {v(m)}, {v(T)}, {v(T + 2)}')
    for i in range(2, 8):
        a(f'v_add_f32 {v(m)}, {v(m)}, {v(T + 2 * i)}')
    xor_reduce('v_add_f32', m, t, levels=(32,))
    a(f'v_mul_f32 {v(m)}, {hx(f2u(1.0 / 16))}, {v(m)}')
    a(f'v_add_f32 {v(q)}, {v(T + 1)}, {v(T + 3)}')
    for i in range(2, 8):
        a(f'v_add_f32 {v(q)}, {v(q)}, {v(T + 2 * i + 1)}')
    for i in range(8):
        a(f'v_sub_f32 {v(T + 2 * i)}, {v(T + 2 * i)}, {v(m)}')
    a(f'v_mul_f32 {v(t)}, {v(T)}, {v(T)}')
    for i in range(1, 8):
        a(f'v_fmac_f32 {v(t)}, {v(T + 2 * i)}, {v(T + 2 * i)}')
    a(f'v_fmac_f32 {v(q)}, {hx(f2u(32.0))}, {v(t)}')
    xor_reduce('v_add_f32', q, t, levels=(32,))
    a(f'v_mul_f32 {v(q)}, {hx(f2u(1.0 / 512))}, {v(q)}')
    round_bf16(m)
    round_bf16(q)
    a(f'v_add_f32 {v(q)}, {hx(f2u(1e-5))}, {v(q)}')
    round_bf16(q)
    a(f'v_sqrt_f32 {v(q)}, {v(q)}')
    round_bf16(q)
    a(f'v_rcp_f32 {v(q)}, {v(q)}')
    a(f'v_sub_f32 {v(m)}, 0, {v(m)}')
    a(f'ds_write_b32 {v(vscrw)}, {v(q)}')
    a(f'ds_write_b32 {v(vscrw)}, {v(m)} offset:128')


SCALE_C = (128 ** -0.5) * math.log2(math.e)


def softmax12(S, PX, PMH, PML, T, sC):
    m, l, t = T, T + 1, T + 2
    a(f'v_max3_f32 {v(m)}, {v(S)}, {v(S + 1)}, {v(S + 2)}')
    a(f'v_max3_f32 {v(t)}, {v(S + 3)}, {v(S + 4)}, {v(S + 5)}')
    a(f'v_max3_f32 {v(l)}, {v(S + 6)}, {v(S + 7)}, {v(S + 8)}')
    a(f'v_max3_f32 {v(m)}, {v(m)}, {v(S + 9)}, {v(S + 10)}')
    a(f'v_max3_f32 {v(t)}, {v(t)}, {v(l)}, {v(S + 11)}')
    a(f'v_max_f32 {v(m)}, {v(m)}, {v(t)}')
    xor_reduce('v_max_f32', m, t)
    a(f'v_mul_f32 {v(m)}, {sC}, {v(m)}')
    for i in range(12):
        a(f'v_fma_f32 {v(S + i)}, {v(S + i)}, {sC}, -{v(m)}')
    for i in range(12):
        a(f'v_exp_f32 {v(S + i)}, {v(S + i)}')
    for i in range(4):
        a(f'v_cvt_pk_bf16_f32 {v(PX + i)}, {v(S + 2 * i)}, {v(S + 2 * i + 1)}')
    for i in range(2):
        a(f'v_cvt_pk_bf16_f32 {v(PMH + i)}, {v(S + 8 + 2 * i)}, {v(S + 9 + 2 * i)}')

    def tail1():
        for i in range(2):
            a(f'v_mov_b32 {v(t + i)}, {v(PMH + i)}')
            a(f'v_mov_b32 {v(PML + i)}, 0')
        for i in range(2):
            a(f'v_permlane32_swap_b32 {v(t + i)}, {v(PML + i)}')

    def tail2():
        a(f'v_add_f32 {v(l)}, {v(S)}, {v(S + 1)}')
        a(f'v_add_f32 {v(m)}, {v(S + 2)}, {v(S + 3)}')
        for i in range(4, 12, 2):
            a(f'v_add_f32 {v(l)}, {v(l)}, {v(S + i)}')
            a(f'v_add_f32 {v(m)}, {v(m)}, {v(S + i + 1)}')
        a(f'v_add_f32 {v(l)}, {v(l)}, {v(m)}')
        xor_reduce('v_add_f32', l, m)
        a(f'v_rcp_f32 {v(l)}, {v(l)}')
    return tail1, tail2


MF32 = 'v_mfma_f32_16x16x32_bf16'
MF16 = 'v_mfma_f32_16x16x16_bf16'
SMF = 'v_smfmac_f32_16x16x64_bf16'


def role_H():
    sHEAD, sREP, sCOL = 's50', 's51', 's52'
    sA1, sB1, sA2, sB2 = 's53', 's54', 's55', 's56'
    sSRC, sDST, sFLG, sJOB = 's57', 's58', 's59', 's60'
    sC = 's61'
    sHI = 's[62:63]'
    MASK = 64
    IN = 0
    SCR = 40960
    ACC, XF, AT, AR, OUTQ, OUTV, CS, CSV = 10, 58, 74, 78, 94, 102, 110, 126
    vROW8, vSCRW, vSCRT, vSCRR, vONE, vZERO, vP, vF = 2, 3, 4, 5, 6, 7, 8, 9

    def W(t, ks):
        return wreg((t * 16 + ks) * 4, 4)

    a.label('ROLE_H')
    a(f's_sub_u32 {sT0}, {sROLE}, {R_H}')
    a(f's_mul_i32 {sHEAD}, {sT0}, 171')
    a(f's_lshr_b32 {sHEAD}, {sHEAD}, 9')
    a(f's_mul_i32 {sT1}, {sHEAD}, 3')
    a(f's_sub_u32 {sREP}, {sT0}, {sT1}')
    a(f's_lshl_b32 {sCOL}, {sHEAD}, 8')
    a(f's_lshl_b32 {sT0}, {sW}, 6')
    a(f's_add_u32 {sCOL}, {sCOL}, {sT0}')
    units = []
    for mi, mat in enumerate(('Wk', 'Wv', 'Wq')):
        t0 = {'Wq': 0, 'Wk': 2, 'Wv': 4}[mat]
        for u in range(8):
            units.append(dict(mat=mat, pitch=8192, row0=64 * u, scol=sCOL, cadd=0, kmode='nat',
                              cmode='nat' if mat == 'Wv' else 'perm',
                              dst=(lambda kk, tile, p, t0=t0, u=u: wreg(((t0 + tile) * 16 + 2 * u + kk) * 4 + 2 * p, 2))))
    load_units(units, 10)
    for i in range(4):
        a(f'v_mov_b32 {v(XF + i)}, 0x3f803f80')
    for t in range(6):
        for ks in range(16):
            c = '0' if ks == 0 else v(ACC + 4 * t, 4)
            if t < 4:
                a(f'{MF32} {v(ACC + 4 * t, 4)}, {W(t, ks)}, {v(XF, 4)}, {c}')
            else:
                a(f'{MF32} {v(ACC + 4 * t, 4)}, {v(XF, 4)}, {W(t, ks)}, {c}')
    for i in range(16):
        a(f'v_mov_b32 {v(CS + i)}, {v(ACC + i)}')
    a(f'v_mov_b32 {v(CSV)}, {v(ACC + 16)}')
    a(f'v_mov_b32 {v(CSV + 1)}, {v(ACC + 20)}')
    census()
    a(f'v_and_b32 {v(vSCRW)}, 31, v0')
    a(f'v_lshrrev_b32 {v(vP)}, 5, v0')
    a(f'v_lshlrev_b32 {v(vROW8)}, 3, {v(vSCRW)}')
    a(f'v_lshl_add_u32 {v(vROW8)}, {v(vP)}, 11, {v(vROW8)}')
    a(f's_lshl_b32 {sT0}, {sW}, 8')
    a(f's_add_u32 {sT0}, {sT0}, {SCR}')
    a(f'v_lshl_add_u32 {v(vSCRW)}, {v(vSCRW)}, 2, {sT0}')
    a(f'v_and_b32 {v(vP)}, 15, v0')
    a(f'v_lshl_add_u32 {v(vSCRT)}, {v(vP)}, 2, {sT0}')
    a(f'v_lshrrev_b32 {v(vF)}, 4, v0')
    a(f'v_lshl_add_u32 {v(vSCRR)}, {v(vF)}, 4, {sT0}')
    a(f'v_mov_b32 {v(vONE)}, 1')
    a(f'v_mov_b32 {v(vZERO)}, 0')
    a(f's_mov_b32 {sC}, {hx(f2u(SCALE_C))}')
    a('s_mov_b32 s62, 0')
    a('s_mov_b32 s63, -1')
    a(f's_and_b32 {sT1}, {sW}, 1')
    a(f's_lshl_b32 {sT1}, {sT1}, 4')
    a(f'v_add_u32 {v(vP)}, {sT1}, {v(vP)}')
    a(f'v_lshlrev_b32 {v(vF)}, 2, {v(vF)}')
    a(f'v_sub_u32 {v(vP)}, {v(vP)}, {v(vF)}')
    for i in range(8):
        thr = (i & 3) + 16 * (i >> 2)
        a(f'v_cmp_le_i32 {s(MASK + 2 * i, 2)}, {thr}, {v(vP)}')
    for r in (sA1, sB1, sA2, sB2):
        a(f's_mov_b32 {r}, {sREP}')

    a.label('H_LOOP')
    a(f's_cmp_ge_u32 {sB2}, 64')
    a('s_cbranch_scc1 END')
    a(f's_cmp_lg_u32 {sW}, 0')
    a('s_cbranch_scc1 H_DECIDED')
    a(f's_min_u32 {sT0}, {sA2}, 63')
    a(f's_lshl_b32 {sT0}, {sT0}, 7')
    a(f's_add_u32 {sT0}, {sT0}, {hx(FLAG_X + 2 * 64 * 128)}')
    a(f'v_lshl_add_u32 {v(vP)}, v0, 2, {sT0}')
    a(f's_lshl_b32 {sT2}, {sHEAD}, 2')
    a(f's_min_u32 {sT0}, {sB1}, 63')
    a(f's_lshl_b32 {sT0}, {sT0}, 7')
    a(f's_add_u32 {sT0}, {sT0}, {sT2}')
    a(f's_add_u32 {sT0}, {sT0}, {hx(FLAG_M)}')
    a(f'v_writelane_b32 {v(vP)}, {sT0}, 32')
    a(f's_min_u32 {sT0}, {sB2}, 63')
    a(f's_lshl_b32 {sT0}, {sT0}, 7')
    a(f's_add_u32 {sT0}, {sT0}, {sT2}')
    a(f's_add_u32 {sT0}, {sT0}, {hx(FLAG_M + 64 * 128)}')
    a(f'v_writelane_b32 {v(vP)}, {sT0}, 33')
    a(f's_min_u32 {sT3}, {sA1}, 63')
    a(f's_lshl_b32 {sT3}, {sT3}, 7')
    a(f's_add_u32 {sT3}, {sT3}, {hx(FLAG_X)}')
    a(f'v_lshlrev_b32 {v(XF)}, 2, v0')
    a.label('H_POLL')
    a(f'buffer_load_dword {v(vF)}, {v(vP)}, {S_WS}, 0 offen sc1')
    a(f'buffer_load_dword {v(XF + 1)}, {v(XF)}, {S_WS}, {sT3} offen sc1')
    a(f'v_cmp_ne_u32 {sP0}, 0, {v(vF)}')
    a(f'v_cmp_ne_u32 {sP1}, 0, {v(XF + 1)}')
    a(f's_mov_b32 {sJOB}, 2')
    a(f's_cmp_lt_u32 {sB1}, {sA1}')
    a(f's_cselect_b32 {sT0}, s97, 0')
    a(f's_bitcmp1_b32 {sT0}, 0')
    a('s_cbranch_scc1 H_GOT')
    a(f's_mov_b32 {sJOB}, 3')
    a(f's_cmp_lt_u32 {sA2}, 64')
    a(f's_cselect_b32 {sT0}, s96, 0')
    a(f's_cmp_eq_u32 {sT0}, -1')
    a('s_cbranch_scc1 H_GOT')
    a(f's_mov_b32 {sJOB}, 4')
    a(f's_cmp_lt_u32 {sB2}, {sA2}')
    a(f's_cselect_b32 {sT0}, s97, 0')
    a(f's_bitcmp1_b32 {sT0}, 1')
    a('s_cbranch_scc1 H_GOT')
    a(f's_mov_b32 {sJOB}, 1')
    a(f's_cmp_lt_u32 {sA1}, 64')
    a(f's_cselect_b32 {sT0}, s98, 0')
    a(f's_cmp_eq_u32 {sT0}, -1')
    a('s_cbranch_scc1 H_GOT')
    spin_fail(2)
    a('s_sleep 1')
    a('s_branch H_POLL')
    a.label('H_GOT')
    a(f'v_mov_b32 {v(vF)}, {sJOB}')
    a(f'v_mov_b32 {v(vP)}, {LDS_MISC}')
    a(f'ds_write_b32 {v(vP)}, {v(vF)} offset:16')
    a('s_waitcnt lgkmcnt(0)')
    a.label('H_DECIDED')
    a('s_barrier')
    a(f'v_mov_b32 {v(vP)}, {LDS_MISC}')
    a(f'ds_read_b32 {v(vF)}, {v(vP)} offset:16')
    a(f'v_readfirstlane_b32 {sJOB}, {v(vF)}')
    for code, cnt, l in ((1, sA1, 0), (2, sB1, 0), (3, sA2, 1), (4, sB2, 1)):
        nx = a.newlabel('hj')
        a(f's_cmp_lg_u32 {sJOB}, {code}')
        a(f's_cbranch_scc1 {nx}')
        a(f's_add_u32 {sT2}, {cnt}, {64 * l}')
        a(f's_add_u32 {sT3}, {cnt}, {128 * l}')
        a(f's_add_u32 {cnt}, {cnt}, 3')
        a.label(nx)
    a(f's_lshl_b32 {sDST}, {sT2}, 5')
    a(f's_add_u32 {sDST}, {sDST}, {sHEAD}')
    a(f's_lshl_b32 {sDST}, {sDST}, 15')
    a(f's_add_u32 {sDST}, {sDST}, {hx(QB)}')
    a(f's_lshl_b32 {sFLG}, {sT2}, 9')
    a(f's_lshl_b32 {sT0}, {sHEAD}, 4')
    a(f's_add_u32 {sFLG}, {sFLG}, {sT0}')
    a(f's_lshl_b32 {sT0}, {sW}, 2')
    a(f's_add_u32 {sFLG}, {sFLG}, {sT0}')
    a(f's_bitcmp0_b32 {sJOB}, 0')
    a('s_cbranch_scc1 H_JOB_B')

    a(f's_add_u32 {sFLG}, {sFLG}, {hx(FLAG_KV)}')
    a(f's_mul_i32 {sSRC}, {sT3}, {XBLK}')
    a(f's_add_u32 {sSRC}, {sSRC}, {hx(XB)}')
    dma_block(sSRC, IN, 9, '#hdma')
    a(f's_lshl_b32 {sT0}, {sW}, 10')
    a(f's_add_u32 {sSRC}, {sDST}, {sT0}')
    a(f's_add_u32 {sDST}, {sSRC}, {sT0}')
    a(f's_add_u32 {sDST}, {sDST}, 16384')
    a('s_waitcnt vmcnt(0)')
    a('s_barrier')

    def pre():
        stats_combine(IN + 32768, SCR, ACC + 24, vROW8, vSCRW)
        for m in range(2):
            a(f'ds_read_b32 {v(AT + 2 * m)}, {v(vSCRT)} offset:{64 * m}')
            a(f'ds_read_b32 {v(AT + 2 * m + 1)}, {v(vSCRT)} offset:{128 + 64 * m}')
            a(f'ds_read_b128 {v(AR + 8 * m, 4)}, {v(vSCRR)} offset:{64 * m}')
            a(f'ds_read_b128 {v(AR + 8 * m + 4, 4)}, {v(vSCRR)} offset:{128 + 64 * m}')

    def gemm(m):
        A = ACC + 24 * m
        PF = 3
        if m == 0:
            for k in range(PF):
                a(f'ds_read_b128 {v(XF + 4 * (k % 4), 4)}, v1 offset:{IN + k * 1024}')
        for ks in range(16):
            f = m * 16 + ks
            if f + PF < 32:
                a(f'ds_read_b128 {v(XF + 4 * ((f + PF) % 4), 4)}, v1 offset:{IN + (f + PF) * 1024}')
            x = v(XF + 4 * (f % 4), 4)
            for t in range(6):
                c = '0' if ks == 0 else v(A + 4 * t, 4)
                if t < 4:
                    a(f'{MF32} {v(A + 4 * t, 4)}, {W(t, ks)}, {x}, {c}')
                else:
                    a(f'{MF32} {v(A + 4 * t, 4)}, {x}, {W(t, ks)}, {c}')

    def epi(m):
        A = ACC + 24 * m
        for qk in (1, 0):
            for i in range(8):
                r = A + 8 * qk + i
                a(f'v_fma_f32 {v(r)}, {v(AT + 2 * m + 1)}, {v(CS + 8 * qk + i)}, {v(r)}')
                a(f'v_mul_f32 {v(r)}, {v(AT + 2 * m)}, {v(r)}')
            for i in range(4):
                a(f'v_cvt_pk_bf16_f32 {v(OUTQ + 4 * qk + i)}, {v(A + 8 * qk + 2 * i)}, {v(A + 8 * qk + 2 * i + 1)}')
            a(f's_add_u32 {sT0}, {sSRC}, {8192 * qk + 4096 * m}')
            a(f'buffer_store_dwordx4 {v(OUTQ + 4 * qk, 4)}, v1, {S_WS}, {sT0} offen sc1')
        for t in range(2):
            for i in range(4):
                r = A + 16 + 4 * t + i
                a(f'v_fma_f32 {v(r)}, {v(AR + 8 * m + 4 + i)}, {v(CSV + t)}, {v(r)}')
                a(f'v_mul_f32 {v(r)}, {v(AR + 8 * m + i)}, {v(r)}')
            for i in range(2):
                a(f'v_cvt_pk_bf16_f32 {v(OUTV + 4 * t + 2 * m + i)}, {v(A + 16 + 4 * t + 2 * i)}, {v(A + 16 + 4 * t + 2 * i + 1)}')
            if m == 1:
                a(f'buffer_store_dwordx4 {v(OUTV + 4 * t, 4)}, v1, {S_WS}, {sDST} offen offset:{1024 * t} sc1')

    a.interleave(a.capture(gemm, 0), a.capture(pre), per=2, start=2)
    a.interleave(a.capture(gemm, 1), a.capture(epi, 0), per=2, start=3)
    epi(1)
    a('s_waitcnt vmcnt(0)')
    set_flag(sFLG, vONE, vZERO)
    a('s_branch H_LOOP')

    a.label('H_JOB_B')
    a(f's_add_u32 {sFLG}, {sFLG}, {hx(FLAG_O)}')
    a(f's_mov_b32 {sSRC}, {sT2}')
    dma_block(sDST, IN, 8, '#hdma')
    a(f's_lshl_b32 {sDST}, {sSRC}, 18')
    a(f's_add_u32 {sDST}, {sDST}, {hx(OB)}')
    a(f's_and_b32 {sT0}, {sW}, 1')
    a(f's_lshl_b32 {sT1}, {sT0}, 17')
    a(f's_add_u32 {sDST}, {sDST}, {sT1}')
    a(f's_lshl_b32 {sT1}, {sHEAD}, 12')
    a(f's_add_u32 {sDST}, {sDST}, {sT1}')
    a(f's_lshr_b32 {sT2}, {sW}, 1')
    a(f's_lshl_b32 {sT1}, {sT2}, 11')
    a(f's_add_u32 {sDST}, {sDST}, {sT1}')
    Q, KF, S, VV, VM, O, PX, PMH, PML, T = 10, 26, 74, 86, 102, 58, 26, 30, 32, 34
    a(f's_lshl_b32 {sT0}, {sT0}, 12')
    a(f'v_add_u32 {v(vP)}, {sT0}, v1')
    a(f's_lshl_b32 {sT1}, {sT2}, 12')
    a(f'v_add_u32 {v(vF)}, {sT1}, v1')
    a(f's_lshl_b32 {sT1}, {sT2}, 10')
    a(f'v_lshlrev_b32 {v(106)}, 3, v0')
    a(f'v_add_u32 {v(106)}, {sT1}, {v(106)}')
    a('s_waitcnt vmcnt(0)')
    a('s_barrier')
    for ks in range(4):
        a(f'ds_read_b128 {v(Q + 4 * ks, 4)}, {v(vP)} offset:{IN + ks * 1024}')
    for j in range(12):
        off = 24576 + j * 1024 if j < 4 else 8192 + (j - 4) * 1024
        a(f'ds_read_b128 {v(KF + 4 * j, 4)}, v1 offset:{IN + off}')
    for j in range(12):
        ks = j % 4
        d = S + (8, 0, 4)[j // 4]
        c = '0' if ks == 0 else v(d, 4)
        a(f'{MF32} {v(d, 4)}, {v(KF + 4 * j, 4)}, {v(Q + 4 * ks, 4)}, {c}')
    for d in range(4):
        a(f'ds_read_b128 {v(VV + 4 * d, 4)}, {v(vF)} offset:{IN + 16384 + d * 1024}')
    for d in range(2):
        a(f'ds_read_b64 {v(VM + 2 * d, 2)}, {v(106)} offset:{IN + 28672 + d * 512}')
    a(f'v_mov_b32 {v(107)}, 0xff800000')
    for i in range(4):
        a(f'v_cndmask_b32 {v(S + 8 + i)}, {v(107)}, {v(S + 8 + i)}, {sHI}')
    for i in range(8):
        a(f'v_cndmask_b32 {v(S + i)}, {v(107)}, {v(S + i)}, {s(MASK + 2 * i, 2)}')
    t1, t2 = softmax12(S, PX, PMH, PML, T, sC)
    for d in range(4):
        a(f'{MF32} {v(O + 4 * d, 4)}, {v(VV + 4 * d, 4)}, {v(PX, 4)}, 0')
    t1()
    for d in range(4):
        a(f'{MF16} {v(O + 4 * d, 4)}, {v(VM + 2 * (d >> 1), 2)}, {v(PMH if d & 1 else PML, 2)}, {v(O + 4 * d, 4)}')
    t2()
    for c in range(2):
        for i in range(8):
            a(f'v_mul_f32 {v(O + 8 * c + i)}, {v(T + 1)}, {v(O + 8 * c + i)}')
        for i in range(4):
            a(f'v_cvt_pk_bf16_f32 {v(Q + 4 * c + i)}, {v(O + 8 * c + 2 * i)}, {v(O + 8 * c + 2 * i + 1)}')
        a(f'buffer_store_dwordx4 {v(Q + 4 * c, 4)}, v1, {S_WS}, {sDST} offen offset:{1024 * c} sc1')
    a('s_waitcnt vmcnt(0)')
    set_flag(sFLG, vONE, vZERO)
    a('s_branch H_LOOP')


def role_proj(kind):
    isW = kind == 'W'
    NKS = 32 if isW else 14
    NCG = 1 if isW else 2
    NT = 2 * NCG
    sGRP, sCG, sCOL, sTIME, sCNT, sLS, sPAR = 's55', 's56', 's57', 's58', 's59', 's60', 's61'
    sSRC, sRES, sDST, sFLG, sLAY, sSUB = 's62', 's63', 's64', 's65', 's66', 's67'
    vPOLL, vONE, vZERO, vST, vRW, vRR, vOUT, vT = 2, 3, 4, 5, 6, 7, 8, 9
    ACC = 16
    RESR = 48
    SUM = 52
    X8 = 84
    RING, NR = 128, 32
    RED = 0
    REDW = 2 * NCG * 2 * 1024
    P = kind

    def Wt(ks, t):
        return ar((ks * NT + t) * 4, 4)

    a.label(f'ROLE_{P}')
    census()
    a(f's_sub_u32 s50, {sROLE}, {R_W}')
    x0_job('s50')
    a(f's_sub_u32 {sT0}, {sROLE}, {R_W if isW else R_F2}')
    a(f's_lshr_b32 {sGRP}, {sT0}, {4 if isW else 3}')
    a(f's_and_b32 {sCG}, {sT0}, {15 if isW else 7}')
    a(f's_mul_i32 {sCOL}, {sW}, {NKS * 32 * 1024}')
    a(f's_lshl_b32 {sT0}, {sCG}, {6 if isW else 7}')
    a(f's_add_u32 {sCOL}, {sCOL}, {sT0}')
    units = []
    for u in range(NKS // 2):
        for cgl in range(NCG):
            units.append(dict(mat='Wo' if isW else 'Wd', pitch=1024, row0=64 * u, scol=sCOL, cadd=64 * cgl,
                              kmode='att' if isW else 'nat', cmode='perm',
                              dst=(lambda kk, tile, p, u=u, cgl=cgl:
                                   ar(((2 * u + kk) * NT + 2 * cgl + tile) * 4 + 2 * p, 2))))
    load_units(units, 10)
    a('s_barrier')
    if isW:
        a(f'v_min_u32 {v(vPOLL)}, 31, v0')
        a(f'v_lshlrev_b32 {v(vPOLL)}, 2, {v(vPOLL)}')
        a(f's_lshl_b32 {sT0}, {sW}, 7')
    else:
        a(f'v_min_u32 {v(vPOLL)}, 13, v0')
        a(f'v_lshlrev_b32 {v(vPOLL)}, 2, {v(vPOLL)}')
        a(f's_mul_i32 {sT0}, {sW}, 56')
    a(f'v_add_u32 {v(vPOLL)}, {sT0}, {v(vPOLL)}')
    a(f'v_mov_b32 {v(vONE)}, 1')
    a(f'v_mov_b32 {v(vZERO)}, 0')
    a(f'v_and_b32 {v(vST)}, 15, v0')
    a(f'v_lshlrev_b32 {v(vOUT)}, 10, {v(vST)}')
    a(f'v_lshrrev_b32 {v(vT)}, 4, v0')
    a(f'v_lshl_add_u32 {v(vOUT)}, {v(vT)}, 4, {v(vOUT)}')
    a(f'v_lshlrev_b32 {v(vST)}, 3, {v(vST)}')
    a(f's_mul_i32 {sT0}, {sW}, {REDW}')
    a(f'v_add_u32 {v(vRW)}, {sT0}, v1')
    a(f's_and_b32 {sT0}, {sW}, 1')
    a(f's_lshr_b32 {sT1}, {sW}, 1')
    a(f's_mul_i32 {sT2}, {sT0}, {NCG}')
    a(f's_add_u32 {sT2}, {sT2}, {sT1}')
    a(f's_lshl_b32 {sT2}, {sT2}, 11')
    a(f'v_add_u32 {v(vRR)}, {sT2}, v1')
    if isW:
        a(f's_mov_b32 {sSUB}, {sCG}')
    else:
        a(f's_lshl_b32 {sSUB}, {sCG}, 1')
        a(f's_add_u32 {sSUB}, {sSUB}, {sT1}')
    if not isW:
        set_aux('out')
    a(f's_mov_b32 {sTIME}, 0')
    a(f's_mov_b32 {sCNT}, 0')
    a(f's_mov_b32 {sPAR}, 0')

    a.label(f'{P}_LOOP')
    if isW:
        a(f's_cmp_ge_u32 {sTIME}, {2 * (64 + LG)}')
        a('s_cbranch_scc1 END')
        a(f's_and_b32 {sLAY}, {sTIME}, 1')
        a(f's_lshr_b32 {sT0}, {sTIME}, 1')
        a(f's_mul_i32 {sT1}, {sLAY}, {LG}')
        a(f's_sub_u32 {sT0}, {sT0}, {sT1}')
        a(f's_add_u32 {sTIME}, {sTIME}, 1')
        a(f's_cmp_ge_u32 {sT0}, 64')
        a(f's_cbranch_scc1 {P}_LOOP')
        a(f's_mov_b32 {sT1}, {sCNT}')
        a(f's_add_u32 {sCNT}, {sCNT}, 1')
        a(f's_cmp_eq_u32 {sCNT}, 3')
        a(f's_cselect_b32 {sCNT}, 0, {sCNT}')
        a(f's_cmp_lg_u32 {sT1}, {sGRP}')
        a(f's_cbranch_scc1 {P}_LOOP')
    else:
        a(f's_cmp_ge_u32 {sTIME}, 64')
        a('s_cbranch_scc1 END')
        a(f's_mov_b32 {sLAY}, {sGRP}')
        a(f's_mov_b32 {sT0}, {sTIME}')
        a(f's_add_u32 {sTIME}, {sTIME}, 1')
    a(f's_lshl_b32 {sLS}, {sLAY}, 6')
    a(f's_add_u32 {sLS}, {sLS}, {sT0}')
    a(f's_lshl_b32 {sT1}, {sLAY}, 7')
    a(f's_add_u32 {sT1}, {sT1}, {sT0}')
    a(f's_add_u32 {sT1}, {sT1}, {0 if isW else 64}')
    a(f's_mul_i32 {sRES}, {sT1}, {XBLK}')
    a(f's_add_u32 {sRES}, {sRES}, {hx(XB)}')
    a(f's_add_u32 {sFLG}, {sT1}, 64')
    a(f's_lshl_b32 {sFLG}, {sFLG}, 7')
    a(f's_and_b32 {sT2}, {sW}, 1')
    a(f's_lshl_b32 {sT3}, {sSUB}, 1')
    a(f's_add_u32 {sT3}, {sT3}, {sT2}')
    a(f's_lshl_b32 {sT3}, {sT3}, 2')
    a(f's_add_u32 {sFLG}, {sFLG}, {sT3}')
    a(f's_add_u32 {sFLG}, {sFLG}, {hx(FLAG_X)}')
    a(f's_lshl_b32 {sT2}, {sT2}, 4')
    a(f's_add_u32 {sT2}, {sT2}, {sSUB}')
    a(f's_lshl_b32 {sT2}, {sT2}, 10')
    a(f's_add_u32 {sDST}, {sRES}, {64 * XBLK}')
    a(f's_add_u32 {sRES}, {sRES}, {sT2}')
    if isW:
        a(f's_lshl_b32 {sSRC}, {sLS}, 18')
        a(f's_add_u32 {sSRC}, {sSRC}, {hx(OB)}')
        a(f's_lshl_b32 {sT1}, {sW}, 15')
        a(f's_lshl_b32 {sT3}, {sLS}, 9')
        a(f's_add_u32 {sT3}, {sT3}, {hx(FLAG_O)}')
        MSTR = 128 * 1024
    else:
        a(f's_mul_i32 {sSRC}, {sLS}, {HBLK}')
        a(f's_add_u32 {sSRC}, {sSRC}, {hx(HB)}')
        a(f's_mul_i32 {sT1}, {sW}, {14 * 1024}')
        a(f's_lshl_b32 {sT3}, {sLS}, 8')
        a(f's_add_u32 {sT3}, {sT3}, {hx(FLAG_H)}')
        MSTR = 56 * 1024
    a(f's_add_u32 {sSRC}, {sSRC}, {sT1}')
    poll_all(vPOLL, sT3, vT, 3 if isW else 4)
    frs = [(ks, m) for ks in range(NKS) for m in range(2)]

    def ld(n):
        ks, m = frs[n]
        off = m * MSTR + ks * 1024
        base = off & ~4095
        a(f's_add_u32 {sT0}, {sSRC}, {hx(base)}')
        a(f'buffer_load_dwordx4 {v(RING + 4 * (n % NR), 4)}, v1, {S_WS}, {sT0} offen offset:{off - base} sc1')

    npre = min(NR, len(frs))
    for n in range(npre):
        ld(n)
    a(f'buffer_load_dwordx4 {v(RESR, 4)}, v1, {S_WS}, {sRES} offen sc1')
    for n, (ks, m) in enumerate(frs):
        for t in range(NT):
            d = v(ACC + (m * NT + t) * 4, 4)
            a(f'{MF32} {d}, {Wt(ks, t)}, {v(RING + 4 * (n % NR), 4)}, {"0" if ks == 0 else d}')
        if n + NR < len(frs):
            ld(n + NR)
    a(f's_mul_i32 {sT0}, {sPAR}, {4 * REDW}')
    a(f'v_add_u32 {v(vT)}, {sT0}, {v(vRW)}')
    for j in range(2 * NT):
        a(f'ds_write_b128 {v(vT)}, {v(ACC + 4 * j, 4)} offset:{RED + j * 1024}')
    a(f'v_add_u32 {v(vT)}, {sT0}, {v(vRR)}')
    a(f's_xor_b32 {sPAR}, {sPAR}, 1')
    a('s_waitcnt lgkmcnt(0)')
    a('s_barrier')
    if isW:
        a(f's_cmp_ge_u32 {sW}, 2')
        a(f's_cbranch_scc1 {P}_LOOP')
    for w in range(4):
        for h in range(2):
            a(f'ds_read_b128 {v(SUM + 8 * w + 4 * h, 4)}, {v(vT)} offset:{RED + w * REDW + h * 1024}')
    unpack8(RESR, X8)
    for i in range(8):
        a(f'v_add_f32 {v(SUM + i)}, {v(SUM + i)}, {v(SUM + 8 + i)}')
        a(f'v_add_f32 {v(SUM + 16 + i)}, {v(SUM + 16 + i)}, {v(SUM + 24 + i)}')
    for i in range(8):
        a(f'v_add_f32 {v(SUM + i)}, {v(SUM + i)}, {v(SUM + 16 + i)}')
    for i in range(4):
        a(f'v_cvt_pk_bf16_f32 {v(SUM + 8 + i)}, {v(SUM + 2 * i)}, {v(SUM + 2 * i + 1)}')
    unpack8(SUM + 8, SUM)
    for i in range(8):
        a(f'v_add_f32 {v(X8 + i)}, {v(X8 + i)}, {v(SUM + i)}')
    for i in range(4):
        a(f'v_cvt_pk_bf16_f32 {v(SUM + 12 + i)}, {v(X8 + 2 * i)}, {v(X8 + 2 * i + 1)}')
    if not isW:
        lo = a.newlabel('f2o')
        a(f's_cmp_eq_u32 {sLAY}, 0')
        a(f's_cbranch_scc1 {lo}')
        a(f's_sub_u32 {sT0}, {sLS}, 64')
        a(f's_lshl_b32 {sT0}, {sT0}, 15')
        a(f's_and_b32 {sT1}, {sW}, 1')
        a(f's_lshl_b32 {sT1}, {sT1}, 14')
        a(f's_add_u32 {sT0}, {sT0}, {sT1}')
        a(f's_lshl_b32 {sT1}, {sSUB}, 6')
        a(f's_add_u32 {sT0}, {sT0}, {sT1}')
        a(f'buffer_store_dwordx4 {v(SUM + 12, 4)}, {v(vOUT)}, {S_AUX}, {sT0} offen')
        a(f's_branch {P}_LOOP')
        a.label(lo)
    a(f's_add_u32 {sT0}, {sRES}, {64 * XBLK}')
    a(f'buffer_store_dwordx4 {v(SUM + 12, 4)}, v1, {S_WS}, {sT0} offen sc1')
    unpack8(SUM + 12, X8)
    part_stats(X8, X8 + 8, X8 + 9, X8 + 10)
    a(f's_lshl_b32 {sT0}, {sSUB}, 8')
    a(f's_add_u32 {sT0}, {sT0}, {sDST}')
    a(f's_and_b32 {sT1}, {sW}, 1')
    a(f's_lshl_b32 {sT1}, {sT1}, 7')
    a(f's_add_u32 {sT0}, {sT0}, {sT1}')
    a(f's_add_u32 {sT0}, {sT0}, 32768')
    a('s_mov_b64 exec, 0xffff')
    a(f'buffer_store_dwordx2 {v(X8 + 8, 2)}, {v(vST)}, {S_WS}, {sT0} offen sc1')
    a('s_mov_b64 exec, -1')
    a('s_waitcnt vmcnt(0)')
    set_flag(sFLG, vONE, vZERO)
    a(f's_branch {P}_LOOP')


def role_F1():
    sLAY, sJ, sCOL, sSEG, sSRC, sDST, sFLG, sKS = 's50', 's51', 's52', 's53', 's54', 's55', 's56', 's57'
    IN, SCR = 0, 40960
    vROW8, vSCRW, vSCRT, vONE, vZERO, vP, vF, vC1, vC2 = 2, 3, 4, 5, 6, 7, 8, 9, 10
    ACC, XF, AT, CS, OUT, T, ST = 16, 48, 64, 68, 84, 92, 100

    def W(t, ks):
        return ar((t * 16 + ks) * 4, 4)

    a.label('ROLE_F1')
    a(f's_sub_u32 {sT0}, {sROLE}, {R_F1}')
    a(f's_cmp_ge_u32 {sT0}, 14')
    a(f's_cselect_b32 {sLAY}, 1, 0')
    a(f's_mul_i32 {sT1}, {sLAY}, 14')
    a(f's_sub_u32 {sJ}, {sT0}, {sT1}')
    a(f's_lshl_b32 {sKS}, {sJ}, 2')
    a(f's_add_u32 {sKS}, {sKS}, {sW}')
    a(f's_lshl_b32 {sCOL}, {sKS}, 6')
    units = []
    for mi, mat in enumerate(('Wg', 'Wu')):
        for u in range(8):
            units.append(dict(mat=mat, pitch=3584, row0=64 * u, scol=sCOL, cadd=0, kmode='nat', cmode='perm',
                              dst=(lambda kk, tile, p, mi=mi, u=u: ar(((2 * mi + tile) * 16 + 2 * u + kk) * 4 + 2 * p, 2))))
    load_units(units, 10)
    for i in range(4):
        a(f'v_mov_b32 {v(XF + i)}, 0x3f803f80')
    for t in range(4):
        for ks in range(16):
            c = '0' if ks == 0 else v(CS + 4 * t, 4)
            a(f'{MF32} {v(CS + 4 * t, 4)}, {W(t, ks)}, {v(XF, 4)}, {c}')
    census()
    a(f'v_and_b32 {v(vSCRW)}, 31, v0')
    a(f'v_lshrrev_b32 {v(vP)}, 5, v0')
    a(f'v_lshlrev_b32 {v(vROW8)}, 3, {v(vSCRW)}')
    a(f'v_lshl_add_u32 {v(vROW8)}, {v(vP)}, 11, {v(vROW8)}')
    a(f's_lshl_b32 {sT0}, {sW}, 8')
    a(f's_add_u32 {sT0}, {sT0}, {SCR}')
    a(f'v_lshlrev_b32 {v(vP)}, 2, {v(vSCRW)}')
    a(f'v_add_u32 {v(vSCRW)}, {sT0}, {v(vP)}')
    a(f'v_and_b32 {v(vF)}, 15, v0')
    a(f'v_lshl_add_u32 {v(vSCRT)}, {v(vF)}, 2, {sT0}')
    a(f'v_mov_b32 {v(vONE)}, 1')
    a(f'v_mov_b32 {v(vZERO)}, 0')
    c1 = -2.0 * math.log2(math.e) * math.sqrt(2.0 / math.pi)
    a(f'v_mov_b32 {v(vC1)}, {hx(f2u(c1))}')
    a(f'v_mov_b32 {v(vC2)}, {hx(f2u(c1 * 0.044715))}')
    a(f's_mov_b32 {sSEG}, 0')
    a.label('F1_LOOP')
    a(f's_cmp_ge_u32 {sSEG}, 64')
    a('s_cbranch_scc1 END')
    a(f's_lshl_b32 {sT2}, {sLAY}, 7')
    a(f's_add_u32 {sT2}, {sT2}, {sSEG}')
    a(f's_add_u32 {sT2}, {sT2}, 64')
    a(f's_mul_i32 {sSRC}, {sT2}, {XBLK}')
    a(f's_add_u32 {sSRC}, {sSRC}, {hx(XB)}')
    a(f's_lshl_b32 {sT3}, {sT2}, 7')
    a(f's_add_u32 {sT3}, {sT3}, {hx(FLAG_X)}')
    a(f's_lshl_b32 {sT2}, {sLAY}, 6')
    a(f's_add_u32 {sT2}, {sT2}, {sSEG}')
    a(f's_mul_i32 {sDST}, {sT2}, {HBLK}')
    a(f's_add_u32 {sDST}, {sDST}, {hx(HB)}')
    a(f's_lshl_b32 {sT0}, {sKS}, 10')
    a(f's_add_u32 {sDST}, {sDST}, {sT0}')
    a(f's_lshl_b32 {sFLG}, {sT2}, 8')
    a(f's_lshl_b32 {sT0}, {sKS}, 2')
    a(f's_add_u32 {sFLG}, {sFLG}, {sT0}')
    a(f's_add_u32 {sFLG}, {sFLG}, {hx(FLAG_H)}')
    a(f's_add_u32 {sSEG}, {sSEG}, 1')
    poll_all(vP, sT3, vF, 5)
    a('s_barrier')
    dma_block(sSRC, IN, 9, '#fdma')
    a('s_waitcnt vmcnt(0)')
    a('s_barrier')

    def pre():
        stats_combine(IN + 32768, SCR, ST, vROW8, vSCRW)
        for m in range(2):
            a(f'ds_read_b32 {v(AT + 2 * m)}, {v(vSCRT)} offset:{64 * m}')
            a(f'ds_read_b32 {v(AT + 2 * m + 1)}, {v(vSCRT)} offset:{128 + 64 * m}')

    def gemm(m):
        A = ACC + 16 * m
        PF = 3
        if m == 0:
            for k in range(PF):
                a(f'ds_read_b128 {v(XF + 4 * (k % 4), 4)}, v1 offset:{IN + k * 1024}')
        for ks in range(16):
            f = m * 16 + ks
            if f + PF < 32:
                a(f'ds_read_b128 {v(XF + 4 * ((f + PF) % 4), 4)}, v1 offset:{IN + (f + PF) * 1024}')
            x = v(XF + 4 * (f % 4), 4)
            for t in range(4):
                c = '0' if ks == 0 else v(A + 4 * t, 4)
                a(f'{MF32} {v(A + 4 * t, 4)}, {W(t, ks)}, {x}, {c}')

    def epi(m):
        A = ACC + 16 * m
        for i in range(8):
            g, u, t = A + i, A + 8 + i, T + i
            a(f'v_fma_f32 {v(g)}, {v(AT + 2 * m + 1)}, {v(CS + i)}, {v(g)}')
            a(f'v_fma_f32 {v(u)}, {v(AT + 2 * m + 1)}, {v(CS + 8 + i)}, {v(u)}')
            a(f'v_mul_f32 {v(g)}, {v(AT + 2 * m)}, {v(g)}')
            a(f'v_mul_f32 {v(u)}, {v(AT + 2 * m)}, {v(u)}')
            a(f'v_mul_f32 {v(t)}, {v(g)}, {v(g)}')
            a(f'v_fma_f32 {v(t)}, {v(t)}, {v(vC2)}, {v(vC1)}')
            a(f'v_mul_f32 {v(t)}, {v(t)}, {v(g)}')
            a(f'v_exp_f32 {v(t)}, {v(t)}')
            a(f'v_mul_f32 {v(u)}, {v(u)}, {v(g)}')
            a(f'v_add_f32 {v(t)}, 1.0, {v(t)}')
            a(f'v_rcp_f32 {v(t)}, {v(t)}')
            a(f'v_mul_f32 {v(u)}, {v(u)}, {v(t)}')
        for i in range(4):
            a(f'v_cvt_pk_bf16_f32 {v(OUT + 4 * m + i)}, {v(A + 8 + 2 * i)}, {v(A + 8 + 2 * i + 1)}')
        a(f's_add_u32 {sT0}, {sDST}, {56 * 1024 * m}')
        a(f'buffer_store_dwordx4 {v(OUT + 4 * m, 4)}, v1, {S_WS}, {sT0} offen sc1')

    a.interleave(a.capture(gemm, 0), a.capture(pre), per=2, start=2)
    a.interleave(a.capture(gemm, 1), a.capture(epi, 0), per=2, start=3)
    epi(1)
    a('s_waitcnt vmcnt(0)')
    set_flag(sFLG, vONE, vZERO)
    a('s_branch F1_LOOP')


def role_chain():
    sLAY, sH, sCOL, sCOLO, sSTEP = 's50', 's51', 's52', 's53', 's54'
    sPB, sMB, sQB, sKVF, sMF, sC = 's55', 's56', 's57', 's58', 's59', 's60'
    sPS, sMS, sKB, sPO, sMO = 's61', 's62', 's63', 's64', 's65'
    sHI = 's[66:67]'
    sLO8 = 's[68:69]'
    sPST = 's70'
    KBUF, MS, QK, OX, VMX = 131072, 147456, 155648, 159744, 161792
    vIDX, vLW, vQW, vTR, vOW, vP1S, vP1L, vP2S, vL8, vONE, vZERO = 2, 3, 4, 5, 6, 7, 8, 9, 10, 11, 12
    vKV = 13
    MFR = 16
    B0 = 48
    VX = 80
    AQ = 96
    AV = 112
    T = 120
    S = B0

    def unit_regs(gi, u):
        return (gi * 6 + (u - 2)) * 16

    def Bop(gi, u, tile):
        if u < 2:
            return v(B0 + 16 * u + 8 * tile, 8)
        return wreg(unit_regs(gi, u) + 8 * tile, 8)

    def lds_unit_load(gi):
        for u in range(2):
            for q in range(4):
                a(f'ds_read_b128 {v(B0 + 16 * u + 4 * q, 4)}, {v(vLW)} offset:{(gi * 2 + u) * 4096 + q * 1024}')

    a.label('ROLE_CHAIN')
    a(f's_lshr_b32 {sLAY}, {sROLE}, 5')
    a(f's_and_b32 {sH}, {sROLE}, 31')
    a(f's_lshl_b32 {sCOL}, {sH}, 8')
    a(f's_lshl_b32 {sT0}, {sW}, 6')
    a(f's_add_u32 {sCOL}, {sCOL}, {sT0}')
    a(f's_lshl_b32 {sCOLO}, {sH}, 17')
    a(f's_lshl_b32 {sT0}, {sW}, 8')
    a(f's_add_u32 {sCOLO}, {sCOLO}, {sT0}')

    def unit(gi, u):
        lds = u < 2
        dst = (lambda kk, tile, p, gi=gi, u=u: wreg(unit_regs(gi, u) + 8 * tile + 4 * kk + 2 * p, 2))
        if gi < 3:
            return dict(mat=('Wq', 'Wk', 'Wv')[gi], pitch=8192, row0=64 * u, scol=sCOL, cadd=0, kmode='nat',
                        cmode='nat', dst=dst, lds=lds)
        sidx, up = u >> 1, u & 1
        return dict(mat='Wo', pitch=1024, row0=64 * up, scol=sCOLO, cadd=64 * sidx, kmode='cwo', cmode='nat',
                    dst=dst, lds=lds)

    units = [unit(gi, u) for gi in range(4) for u in range(2, 8)] + [unit(gi, u) for gi in range(4) for u in range(2)]
    load_units(units, 16)
    census()
    n, g1, tl, g, t0, t1 = T, T + 1, T + 2, T + 3, T + 4, T + 5
    a(f'v_and_b32 {v(n)}, 15, v0')
    a(f'v_bfe_u32 {v(g1)}, v0, 4, 1')
    a(f'v_lshrrev_b32 {v(tl)}, 5, v0')
    a(f'v_lshrrev_b32 {v(g)}, 4, v0')
    a(f'v_cmp_gt_u32 {sLO8}, 8, {v(n)}')
    a('s_mov_b32 s66, 0')
    a('s_mov_b32 s67, -1')
    a(f'v_mov_b32 {v(t0)}, 0xeeee')
    a(f'v_mov_b32 {v(t1)}, 0x4444')
    a(f'v_cndmask_b32 {v(vIDX)}, {v(t0)}, {v(t1)}, {sLO8}')
    a(f'v_add_u32 {v(vLW)}, {sLB}, v1')
    a(f'v_lshl_add_u32 {v(t0)}, {v(tl)}, 4, {v(n)}')
    a(f'v_lshlrev_b32 {v(t0)}, 5, {v(t0)}')
    a(f'v_lshl_add_u32 {v(t0)}, {v(g1)}, 3, {v(t0)}')
    a(f's_lshl_b32 {sT0}, {sW}, 10')
    a(f's_add_u32 {sT0}, {sT0}, {QK}')
    a(f'v_add_u32 {v(vQW)}, {sT0}, {v(t0)}')
    a(f'v_bfe_u32 {v(t0)}, v0, 2, 2')
    a(f'v_lshl_add_u32 {v(t0)}, {v(g)}, 3, {v(t0)}')
    a(f'v_lshlrev_b32 {v(t0)}, 5, {v(t0)}')
    a(f'v_and_b32 {v(t1)}, 3, v0')
    a(f'v_lshl_add_u32 {v(t0)}, {v(t1)}, 3, {v(t0)}')
    a(f'v_add_u32 {v(vTR)}, {QK}, {v(t0)}')
    a(f's_lshr_b32 {sT0}, {sW}, 1')
    a(f's_lshl_b32 {sT0}, {sT0}, 10')
    a(f's_and_b32 {sT1}, {sW}, 1')
    a(f's_lshl_b32 {sT1}, {sT1}, 7')
    a(f's_add_u32 {sT0}, {sT0}, {sT1}')
    a(f's_add_u32 {sT0}, {sT0}, {OX}')
    a(f'v_add_u32 {v(vOW)}, {sT0}, v1')
    a(f'v_lshlrev_b32 {v(vP1S)}, 13, {v(tl)}')
    a(f'v_lshl_add_u32 {v(vP1S)}, {v(n)}, 4, {v(vP1S)}')
    a(f'v_lshl_add_u32 {v(vP1S)}, {v(g1)}, 3, {v(vP1S)}')
    a(f'v_bfe_u32 {v(t0)}, v0, 2, 1')
    a(f'v_lshlrev_b32 {v(vP1L)}, 3, {v(t0)}')
    a(f'v_bfe_u32 {v(t0)}, v0, 1, 1')
    a(f'v_lshl_add_u32 {v(vP1L)}, {v(t0)}, 2, {v(vP1L)}')
    a(f'v_bfe_u32 {v(t0)}, v0, 3, 1')
    a(f'v_lshl_add_u32 {v(vP1L)}, {v(t0)}, 1, {v(vP1L)}')
    a(f'v_and_b32 {v(t0)}, 1, v0')
    a(f'v_add_u32 {v(vP1L)}, {v(vP1L)}, {v(t0)}')
    a(f'v_lshlrev_b32 {v(vP1L)}, 4, {v(vP1L)}')
    a(f'v_lshl_add_u32 {v(vP1L)}, {v(g)}, 8, {v(vP1L)}')
    a(f'v_lshl_add_u32 {v(vP2S)}, {v(tl)}, 3, {v(n)}')
    a(f'v_lshlrev_b32 {v(vP2S)}, 4, {v(vP2S)}')
    a(f'v_lshl_add_u32 {v(vP2S)}, {v(g1)}, 3, {v(vP2S)}')
    a(f'v_lshlrev_b32 {v(vL8)}, 3, v0')
    a(f'v_mov_b32 {v(vONE)}, 1')
    a(f'v_mov_b32 {v(vZERO)}, 0')
    a(f's_mov_b32 {sC}, {hx(f2u(SCALE_C))}')
    a(f's_lshl_b32 {sPB}, {sLAY}, 19')
    a(f's_add_u32 {sPB}, {sPB}, {hx(PRING)}')
    a(f's_lshl_b32 {sMB}, {sLAY}, 15')
    a(f's_add_u32 {sMB}, {sMB}, {hx(MRING)}')
    a(f's_lshl_b32 {sQB}, {sLAY}, 11')
    a(f's_add_u32 {sQB}, {sQB}, {sH}')
    a(f's_lshl_b32 {sQB}, {sQB}, 15')
    a(f's_add_u32 {sQB}, {sQB}, {hx(QB)}')
    a(f's_lshl_b32 {sKVF}, {sLAY}, 15')
    a(f's_lshl_b32 {sT0}, {sH}, 4')
    a(f's_add_u32 {sKVF}, {sKVF}, {sT0}')
    a(f's_add_u32 {sKVF}, {sKVF}, {hx(FLAG_KV)}')
    a(f's_lshl_b32 {sMF}, {sLAY}, 13')
    a(f's_lshl_b32 {sT0}, {sH}, 2')
    a(f's_add_u32 {sMF}, {sMF}, {sT0}')
    a(f's_add_u32 {sMF}, {sMF}, {hx(FLAG_M)}')
    a(f's_lshl_b32 {sPST}, {sW}, 16')
    a(f's_lshl_b32 {sT0}, {sH}, 8')
    a(f's_add_u32 {sPST}, {sPST}, {sT0}')
    a(f's_cmp_lg_u32 {sSAFE}, 0')
    a('s_cbranch_scc1 CHAIN_SAFE')

    def kv_fetch(buf, sq, skvf):
        a(f'v_and_b32 {v(T + 6)}, 3, v0')
        a(f'v_lshlrev_b32 {v(T + 6)}, 2, {v(T + 6)}')
        poll_all(T + 6, skvf, T + 7, 6)
        a(f's_lshl_b32 {sT0}, {sW}, 11')
        a(f's_add_u32 {sT1}, {sT0}, {sq}')
        a(f's_add_u32 {sT1}, {sT1}, 8192')
        a(f's_add_u32 m0, {sT0}, {KBUF + buf * 8192}')
        a(f's_add_u32 {sT2}, {sT1}, 8192')
        for j in range(2):
            a(f'buffer_load_dwordx4 v1, {S_WS}, {sT1} offen offset:{j * 1024} sc1 lds')
        for j in range(2):
            a(f'buffer_load_dwordx4 {v(VX + 8 * buf + 4 * j, 4)}, v1, {S_WS}, {sT2} offen offset:{j * 1024} sc1')

    def halves(A, out):
        for i in range(4):
            a(f'v_permlane32_swap_b32 {v(A + i)}, {v(A + 4 + i)}')
        for i in range(4):
            a(f'v_add_f32 {v(A + i)}, {v(A + i)}, {v(A + 4 + i)}')
        for i in range(2):
            a(f'v_cvt_pk_bf16_f32 {v(out + i)}, {v(A + 2 * i)}, {v(A + 2 * i + 1)}')

    def body(tagp, sc):
        skip = a.newlabel('cm')
        a(f's_cmp_lg_u32 {sW}, 0')
        a(f's_cbranch_scc1 {skip}')
        set_aux('mem0')
        a(f'v_and_b32 {v(T)}, 7, v0')
        a(f'v_lshlrev_b32 {v(T)}, 10, {v(T)}')
        a(f'v_bfe_u32 {v(T + 1)}, v0, 4, 1')
        a(f'v_lshl_add_u32 {v(T)}, {v(T + 1)}, 4, {v(T)}')
        a(f'v_lshrrev_b32 {v(T + 1)}, 5, v0')
        a(f'v_lshl_add_u32 {v(T)}, {v(T + 1)}, 2, {v(T)}')
        a(f's_lshl_b32 {sT0}, {sH}, 5')
        a(f'buffer_load_dword {v(T + 2)}, {v(T)}, {S_AUX}, {sT0} offen')
        a(f'buffer_load_dword {v(T + 3)}, {v(T)}, {S_AUX}, {sT0} offen offset:8')
        a(f's_lshl_b32 {sT0}, {sH}, 8')
        a(f's_add_u32 {sT0}, {sT0}, {sMB}')
        a(f's_add_u32 {sT0}, {sT0}, {3 * 8192}')
        a(f's_mov_b64 exec, {sLO8}')
        a(f'buffer_store_dwordx2 {v(T + 2, 2)}, {v(vP2S)}, {S_WS}, {sT0} offen{sc}')
        a('s_mov_b64 exec, -1')
        a.label(skip)
        kv_fetch(0, sQB, sKVF)
        a(f's_mov_b32 {sSTEP}, 0')

        a.label(f'{tagp}_LOOP')
        for par in range(2):
            step(tagp, sc, par)
        a(f's_branch {tagp}_LOOP')

    def step(tagp, sc, par):
        lds_unit_load(0)
        for i in range(24):
            a(f'v_mov_b32 {v(AQ + i)}, 0')
        a(f's_lshl_b32 {sT0}, {sW}, 11')
        a(f's_add_u32 {sMS}, {sSTEP}, 3')
        a(f's_and_b32 {sMS}, {sMS}, 3')
        a(f's_lshl_b32 {sMS}, {sMS}, 13')
        a(f's_add_u32 {sMS}, {sMS}, {sMB}')
        a(f's_add_u32 {sMS}, {sMS}, {sT0}')
        a(f's_lshl_b32 {sMO}, {sH}, 8')
        a(f's_add_u32 {sMO}, {sMO}, {sMB}')
        a(f's_and_b32 {sT1}, {sSTEP}, 3')
        a(f's_lshl_b32 {sT1}, {sT1}, 13')
        a(f's_xor_b32 {sKB}, {sT1}, 16384')
        a(f's_add_u32 {sKB}, {sKB}, {sMO}')
        a(f's_add_u32 {sMO}, {sMO}, {sT1}')
        a(f's_add_u32 {sT0}, {sT0}, {MS}')
        a(f'v_add_u32 {v(vKV)}, {sT0}, v1')
        lp, dn = a.newlabel('h2'), a.newlabel('h2d')
        a.label(lp)
        for j in range(2):
            a(f'buffer_load_dwordx4 {v(MFR + 4 * j, 4)}, v1, {S_WS}, {sMS} offen offset:{j * 1024} sc1')
        a(f'v_max3_u32 {v(T)}, {v(MFR)}, {v(MFR + 1)}, {v(MFR + 2)}')
        a(f'v_max3_u32 {v(T + 1)}, {v(MFR + 3)}, {v(MFR + 4)}, {v(MFR + 5)}')
        a(f'v_max3_u32 {v(T)}, {v(T)}, {v(MFR + 6)}, {v(MFR + 7)}')
        a(f'v_max_u32 {v(T)}, {v(T)}, {v(T + 1)}')
        a(f'v_cmp_eq_u32 vcc, -1, {v(T)}')
        a(f's_cbranch_vccz {dn}')
        spin_fail(7)
        a(f's_branch {lp}')
        a.label(dn)
        for j in range(2):
            a(f'ds_write_b128 {v(vKV)}, {v(MFR + 4 * j, 4)} offset:{j * 1024}')
        a('s_waitcnt vmcnt(0) lgkmcnt(0)')
        a('s_barrier')
        a(f'v_mov_b32 {v(vKV)}, {MS}')
        a(f'v_add_u32 {v(vKV)}, {v(vKV)}, v1')
        for u in range(8):
            a(f'ds_read_b128 {v(MFR + 4 * u, 4)}, {v(vKV)} offset:{u * 1024}')
        nf = a.newlabel('nf')
        a(f's_cmp_eq_u32 {sSTEP}, 0')
        a(f's_cbranch_scc1 {nf}')
        a(f's_cmp_lg_u32 {sW}, 1')
        nf2 = a.newlabel('nf')
        a(f's_cbranch_scc1 {nf2}')
        a(f's_sub_u32 {sT0}, {sMF}, 128')
        set_flag(sT0, vONE, vZERO)
        a.label(nf2)
        for i in range(4):
            a(f'v_mov_b32 {v(T + i)}, -1')
        a(f's_lshl_b32 {sT0}, {sH}, 13')
        a(f's_lshl_b32 {sT1}, {sW}, 11')
        a(f's_add_u32 {sT0}, {sT0}, {sT1}')
        a(f's_add_u32 {sT0}, {sT0}, {sPB}')
        a(f's_add_u32 {sT0}, {sT0}, {(par ^ 1) * 262144}')
        for j in range(2):
            a(f'buffer_store_dwordx4 {v(T, 4)}, v1, {S_WS}, {sT0} offen offset:{j * 1024}{sc}', tag='#rst')
        a(f's_cmp_lg_u32 {sW}, 0')
        a(f's_cbranch_scc1 {nf}')
        a('s_mov_b64 exec, 0xffff')
        a(f'buffer_store_dwordx4 {v(T, 4)}, v1, {S_WS}, {sKB} offen{sc}')
        a('s_mov_b64 exec, -1')
        a.label(nf)

        def proj(gi, A):
            for u in range(8):
                for tile in range(2):
                    a(f'{SMF} {v(A + 4 * tile, 4)}, {v(MFR + 4 * u, 4)}, {Bop(gi, u, tile)}, {v(vIDX)}')
                if u == 1 and gi < 2:
                    lds_unit_load(gi + 1)
                if gi == 2:
                    a(f'ds_read_b128 {v(MFR + 4 * u, 4)}, {v(T + 5)} offset:{par * 8192 + u * 1024}')

        a(f'v_mov_b32 {v(T + 5)}, {KBUF}')
        a(f'v_add_u32 {v(T + 5)}, {v(T + 5)}, v1')
        proj(0, AQ)

        def qpost():
            halves(AQ, T)
            a(f'ds_write_b64 {v(vQW)}, {v(T, 2)}')

        a.interleave(a.capture(proj, 1, AQ + 8), a.capture(qpost), per=2, start=4)

        def kpost():
            halves(AQ + 8, T + 2)
            a(f'ds_write_b64 {v(vQW)}, {v(T + 2, 2)} offset:16', tag='#kw')
            a.wait_lg('#kw')
            a('s_barrier')
            for ks in range(4):
                for p in range(2):
                    a(f'ds_read_b64_tr_b16 {v(AQ + 4 * ks + 2 * p, 2)}, {v(vTR)} offset:{(32 * ks + 4 * p) * 32}')

        a.interleave(a.capture(proj, 2, AV), a.capture(kpost), per=2, start=4)
        F = AQ
        last = a.newlabel('last')
        for j in range(12):
            ks = j % 4
            d = S + (8, 0, 4)[j // 4]
            c = '0' if ks == 0 else v(d, 4)
            A = v(F + 4 * ks, 4) if j < 4 else v(MFR + 4 * (j - 4), 4)
            a(f'{MF32} {v(d, 4)}, {A}, {v(F + 4 * ks, 4)}, {c}')
            if j == 3:
                halves(AV, AV)
        a(f's_add_u32 {sT0}, {sQB}, 24576')
        for w in (1, 2, 3):
            nx = a.newlabel('pub')
            a(f's_cmp_lg_u32 {sW}, {w}')
            a(f's_cbranch_scc1 {nx}')
            for ks in {1: (0, 1), 2: (2,), 3: (3,)}[w]:
                a(f'buffer_store_dwordx4 {v(F + 4 * ks, 4)}, v1, {S_WS}, {sT0} offen offset:{ks * 1024} sc1')
            a(f's_add_u32 {sT1}, {sQB}, {28672 + 512 * w}')
            a(f'buffer_store_dwordx2 {v(AV, 2)}, {v(vL8)}, {S_WS}, {sT1} offen sc1')
            a.label(nx)
        nx = a.newlabel('pub')
        a(f's_cmp_lg_u32 {sW}, 0')
        a(f's_cbranch_scc1 {nx}')
        a(f'v_add_u32 {v(T + 4)}, {VMX}, {v(vL8)}')
        a(f'ds_write_b64 {v(T + 4)}, {v(AV, 2)}')
        a.label(nx)
        a(f's_cmp_eq_u32 {sSTEP}, 63')
        a(f's_cbranch_scc1 {tagp}_FINAL')
        PX, PMH, PML = S + 12, S + 16, S + 18
        a(f'v_mov_b32 {v(T + 4)}, 0xff800000')
        for i in range(4):
            a(f'v_cndmask_b32 {v(S + 8 + i)}, {v(T + 4)}, {v(S + 8 + i)}, {sHI}')
        t1, t2 = softmax12(S, PX, PMH, PML, T, sC)
        O = S + 20
        for d in range(2):
            a(f'{MF32} {v(O + 4 * d, 4)}, {v(VX + 8 * par + 4 * d, 4)}, {v(PX, 4)}, 0')
        t1()
        a(f'{MF16} {v(O + 4, 4)}, {v(AV, 2)}, {v(PMH, 2)}, {v(O + 4, 4)}')
        a(f'{MF16} {v(O, 4)}, {v(AV, 2)}, {v(PML, 2)}, {v(O, 4)}')
        t2()
        for i in range(32):
            a(f'v_mov_b32 {v(MFR + i)}, 0')
        for i in range(8):
            a(f'v_mul_f32 {v(O + i)}, {v(T + 1)}, {v(O + i)}')
        for i in range(4):
            a(f'v_cvt_pk_bf16_f32 {v(T + 4 + i)}, {v(O + 2 * i)}, {v(O + 2 * i + 1)}')
        a(f's_mov_b64 exec, {sLO8}')
        a(f'ds_write_b128 {v(vOW)}, {v(T + 4, 4)}')
        a('s_mov_b64 exec, -1')
        lds_unit_load(3)
        a(f'v_mov_b32 {v(T)}, {OX}')
        a(f'v_add_u32 {v(T)}, {v(T)}, v1')
        a.wait_vm('#rst')
        a('s_waitcnt lgkmcnt(8)')
        a('s_barrier')
        OF = AQ
        for j in range(2):
            a(f'ds_read_b128 {v(OF + 4 * j, 4)}, {v(T)} offset:{j * 1024}')
        nx = a.newlabel('fw')
        a(f's_cmp_lg_u32 {sW}, 1')
        a(f's_cbranch_scc1 {nx}')
        a(f'v_add_u32 {v(T + 2)}, {VMX}, {v(vL8)}')
        a(f'ds_read_b64 {v(T + 2, 2)}, {v(T + 2)}')
        a(f's_add_u32 {sT1}, {sQB}, 28672')
        a(f'buffer_store_dwordx2 {v(T + 2, 2)}, {v(vL8)}, {S_WS}, {sT1} offen sc1')
        a.label(nx)
        a(f's_add_u32 {sPS}, {sPB}, {par * 262144}')
        a(f's_add_u32 {sPO}, {sPS}, {sPST}')

        def wo(sidx):
            for up in range(2):
                for tile in range(2):
                    a(f'{SMF} {v(MFR + 8 * sidx + 4 * tile, 4)}, {v(OF + 4 * up, 4)}, {Bop(3, 2 * sidx + up, tile)}, {v(vIDX)}')

        def wopost(sidx):
            o = AQ + 8 + 2 * sidx
            halves(MFR + 8 * sidx, o)
            a(f's_add_u32 {sT0}, {sPO}, {sidx * 16384}')
            a(f'buffer_store_dwordx2 {v(o, 2)}, {v(vP1S)}, {S_WS}, {sT0} offen{sc}')

        order = (1, 2, 3, 0)
        wo(order[0])
        wo(order[1])
        a.interleave(a.capture(wo, order[2]), a.capture(wopost, order[0]), per=3)
        a.interleave(a.capture(wo, order[3]), a.capture(wopost, order[1]), per=3)
        wopost(order[2])
        wopost(order[3])
        a(f's_add_u32 {sSTEP}, {sSTEP}, 1')
        a(f's_add_u32 {sQB}, {sQB}, {hx(MB)}')
        a(f's_add_u32 {sKVF}, {sKVF}, 512')
        a(f's_add_u32 {sMF}, {sMF}, 128')
        nr = a.newlabel('nred')
        a(f's_cmp_lg_u32 {sW}, 0')
        a(f's_cbranch_scc1 {nr}')
        SEL = T + 4
        a(f'v_and_b32 {v(T)}, 15, v0')
        a(f'v_and_b32 {v(T + 1)}, 1, v0')
        a(f'v_lshlrev_b32 {v(T + 1)}, 4, {v(T + 1)}')
        a(f'v_mov_b32 {v(T + 2)}, 0x3f80')
        a(f'v_lshlrev_b32 {v(T + 2)}, {v(T + 1)}, {v(T + 2)}')
        a(f'v_lshrrev_b32 {v(T)}, 1, {v(T)}')
        for i in range(4):
            a(f'v_cmp_eq_u32 vcc, {i}, {v(T)}')
            a(f'v_cndmask_b32 {v(SEL + i)}, 0, {v(T + 2)}, vcc')
        a(f's_lshl_b32 {sT0}, {sH}, 13')
        a(f's_add_u32 {sPS}, {sPS}, {sT0}')
        a(f's_add_u32 {sT3}, {sPS}, 4096')
        lp, dn = a.newlabel('h1'), a.newlabel('h1d')
        a.label(lp)
        for i in range(8):
            a(f'buffer_load_dwordx4 {v(MFR + 4 * i, 4)}, {v(vP1L)}, {S_WS}, {sPS if i < 4 else sT3} offen offset:{(i & 3) * 1024} sc1')
        for i in range(8):
            a(f'{MF32} {v(T, 4)}, {v(MFR + 4 * i, 4)}, {v(SEL, 4)}, {"0" if i == 0 else v(T, 4)}')
        a(f'v_cmp_u_f32 vcc, {v(T)}, {v(T + 1)}')
        a(f'v_cmp_u_f32 {sP0}, {v(T + 2)}, {v(T + 3)}')
        a(f's_or_b64 {sP0}, vcc, {sP0}')
        a(f's_cbranch_scc0 {dn}')
        spin_fail(8)
        a(f's_branch {lp}')
        a.label(dn)
        a(f'v_cvt_pk_bf16_f32 {v(T)}, {v(T)}, {v(T + 1)}')
        a(f'v_cvt_pk_bf16_f32 {v(T + 1)}, {v(T + 2)}, {v(T + 3)}')
        a(f's_mov_b64 exec, {sLO8}')
        a(f'buffer_store_dwordx2 {v(T, 2)}, {v(vP2S)}, {S_WS}, {sMO} offen{sc}')
        a('s_mov_b64 exec, -1')
        a.label(nr)
        nk = a.newlabel('nk')
        a(f's_cmp_ge_u32 {sSTEP}, 63')
        a(f's_cbranch_scc1 {nk}')
        kv_fetch(par ^ 1, sQB, sKVF)
        a.label(nk)

    def final(tagp):
        a.label(f'{tagp}_FINAL')
        a('s_waitcnt lgkmcnt(0)')
        a('s_barrier')
        nx = a.newlabel('fw')
        a(f's_cmp_lg_u32 {sW}, 1')
        a(f's_cbranch_scc1 {nx}')
        a(f'v_add_u32 {v(T + 2)}, {VMX}, {v(vL8)}')
        a(f'ds_read_b64 {v(T + 2, 2)}, {v(T + 2)}')
        a(f's_add_u32 {sT1}, {sQB}, 28672')
        a(f'buffer_store_dwordx2 {v(T + 2, 2)}, {v(vL8)}, {S_WS}, {sT1} offen sc1')
        a.label(nx)
        a('s_waitcnt vmcnt(0)')
        a('s_barrier')
        a(f's_cmp_lg_u32 {sW}, 1')
        a('s_cbranch_scc1 END')
        set_flag(sMF, vONE, vZERO)
        a('s_branch END')

    body('CF', '')
    final('CF')
    a.label('CHAIN_SAFE')
    body('CS', ' sc1')
    final('CS')


def epilogue():
    a.label('TIMEOUT')
    a(f's_lshl_b32 {sT0}, {sERR}, 16')
    a(f's_lshl_b32 {sT1}, {sW}, 8')
    a(f's_or_b32 {sT0}, {sT0}, {sT1}')
    a(f's_or_b32 {sT0}, {sT0}, {sROLE}')
    a(f's_or_b32 {sT0}, {sT0}, 0x40000000')
    a('s_mov_b64 exec, 1')
    a(f'v_mov_b32 v2, {sT0}')
    a(f's_lshl_b32 {sT1}, {sERR}, 2')
    a(f's_add_u32 {sT1}, {sT1}, 64')
    a(f'v_mov_b32 v3, {sT1}')
    a(f'buffer_store_dword v2, v3, {S_DBG}, 0 offen sc1')
    a.label('END')
    a('s_endpgm')


def main():
    prologue()
    role_chain()
    role_H()
    role_proj('W')
    role_proj('F2')
    role_F1()
    epilogue()
    a.insert_waits()
    a.insert_nops()
    ref = open(os.path.join(os.path.dirname(os.path.abspath(__file__)), '..', 'cdna_kernels', NAME + '.s.ref')).read()
    head = []
    for line in ref.splitlines():
        if line.startswith('; @launch'):
            break
        head.append(line)
    out = '\n'.join(head) + '\n'
    out += '; @launch grid=(256,1,1) block=(256,1,1) lds=163840\n'
    out += '.amdgcn_target "amdgcn-amd-amdhsa--gfx950"\n.text\n'
    out += f'.globl {NAME}_kernel\n.p2align 8\n.type {NAME}_kernel,@function\n{NAME}_kernel:\n'
    out += a.text()
    out += f'''.section .rodata,"a"
.p2align 6
.amdhsa_kernel {NAME}_kernel
  .amdhsa_next_free_vgpr 512
  .amdhsa_next_free_sgpr 102
  .amdhsa_accum_offset 256
  .amdhsa_group_segment_fixed_size 0
  .amdhsa_kernarg_size 112
  .amdhsa_user_sgpr_count 2
  .amdhsa_user_sgpr_kernarg_segment_ptr 1
  .amdhsa_system_sgpr_workgroup_id_x 1
  .amdhsa_float_denorm_mode_32 3
.end_amdhsa_kernel
'''
    dst = sys.argv[1] if len(sys.argv) > 1 else os.path.join(os.path.dirname(os.path.abspath(__file__)), '..', 'cdna_kernels', NAME + '.s')
    open(dst, 'w').write(out)
    print('instructions:', len(a.ins), 'bytes of source:', len(out))


main()
```
